```python
import torch

def _softmax(x, axis=-1):
    return torch.softmax(x, dim=axis)
def _gelu(x):
    return torch.nn.functional.gelu(x, approximate="tanh")
def _silu(x):
    return torch.nn.functional.silu(x)
def _sigmoid(x):
    return torch.sigmoid(x)
def _layernorm(x, axis=-1, eps=1e-5):
    m = x.mean(dim=axis, keepdim=True)
    v = x.var(dim=axis, keepdim=True, unbiased=False)
    return (x - m) / torch.sqrt(v + eps)
def _scatter_add(tgt, idx, src, axis=0):
    return tgt.clone().index_add_(axis, idx, src)
def _segment_sum(src, seg, n):
    out = torch.zeros((n,) + src.shape[1:], dtype=src.dtype)
    return out.index_add_(0, seg, src)
def _pad(x, pw):
    flat = tuple(v for pair in reversed(pw) for v in pair)
    return torch.nn.functional.pad(x, flat)

kernel_name = 'sequential_preLN__sliding_block_cached__dense_activation_squared_relu__decode'

def setup_inputs():

    _w = (lambda a: (lambda t: t.to(torch.bfloat16) if t.is_floating_point() else t)(torch.as_tensor(a)))
    def _A_setup():
        B, Sq, D = 1, 1, 512
        Hq, Hkv, Sk, Dh = 32, 32, 32768, 128
        assert Hq % Hkv == 0, (Hq, Hkv)
        return {
            "x": _w((lambda *s: torch.randn(*s, dtype=torch.bfloat16) * 0.05)(B, Sq, D)),
            "k_cache": _w((lambda *s: torch.randn(*s, dtype=torch.bfloat16) * 3.2)(B, Hkv, Sk, Dh)),
            "v_cache": _w((lambda *s: torch.randn(*s, dtype=torch.bfloat16) * 0.4)(B, Hkv, Sk, Dh)),
            "wq": _w((lambda *s: torch.randn(*s, dtype=torch.bfloat16) * 3.2)(D, Hq * Dh) * (D ** -0.5)),
            "wo": _w((lambda *s: torch.randn(*s, dtype=torch.bfloat16) * 0.4)(Hq * Dh, D) * ((Hq * Dh) ** -0.5)),
        }
    _A_in = _A_setup()

    def _B_setup():
        B, S, D, F = 1, 1, 512, 1376
        return {
            "x": _w((lambda *s: torch.randn(*s, dtype=torch.bfloat16) * 0.05)(B, S, D)),
            "w1": _w((lambda *s: torch.randn(*s, dtype=torch.bfloat16) * 0.05)(D, F)),
            "b1": _w((lambda *s: torch.randn(*s, dtype=torch.bfloat16) * 0.8)(F)),
            "w2": _w((lambda *s: torch.randn(*s, dtype=torch.bfloat16) * 0.05)(F, D)),
            "b2": _w((lambda *s: torch.randn(*s, dtype=torch.bfloat16) * 3.2)(D)),
        }
    _B_in = _B_setup()

    return {
        "A_x": _A_in["x"],
        "A_k_cache": _A_in["k_cache"],
        "A_v_cache": _A_in["v_cache"],
        "A_wq": _A_in["wq"],
        "A_wo": _A_in["wo"],
        "B_x": _B_in["x"],
        "B_w1": _B_in["w1"],
        "B_b1": _B_in["b1"],
        "B_w2": _B_in["w2"],
        "B_b2": _B_in["b2"],
    }

def reference(A_x, A_k_cache, A_v_cache, A_wq, A_wo, B_x, B_w1, B_b1, B_w2, B_b2):
    def _A_ref(x, k_cache, v_cache, wq, wo):
        B, Sq, D = x.shape
        Hq, Dh = 32, 128
        Hkv, Sk = k_cache.shape[1], k_cache.shape[2]
        W = min(4096, max(256, Sk // 4))
        rep = Hq // Hkv
        q = (lambda x, *d: x.permute(*d))((x @ wq).reshape(B, Sq, Hq, Dh), 0, 2, 1, 3)
        k = (lambda x, n, axis: torch.repeat_interleave(x, n, dim=axis))(k_cache[:, :, Sk - W:, :], rep, axis=1)
        v = (lambda x, n, axis: torch.repeat_interleave(x, n, dim=axis))(v_cache[:, :, Sk - W:, :], rep, axis=1)
        scores = torch.einsum("bhqd,bhkd->bhqk", q, k) * (Dh ** -0.5)
        p = _softmax(scores, axis=-1)
        o = torch.einsum("bhqk,bhkd->bhqd", p, v)
        return (lambda x, *d: x.permute(*d))(o, 0, 2, 1, 3).reshape(B, Sq, Hq * Dh) @ wo

    def _B_ref(x, w1, b1, w2, b2):
        h = torch.einsum("bsd,df->bsf", x, w1) + b1
        zero = torch.zeros_like(h)
        r = torch.where(h > zero, h, zero)
        h = r * r
        out = torch.einsum("bsf,fd->bsd", h, w2) + b2
        return out

    x = A_x
    h = x + _A_ref(_layernorm(x, axis=-1), A_k_cache, A_v_cache, A_wq, A_wo)
    h2 = h + _B_ref(_layernorm(h, axis=-1), B_w1, B_b1, B_w2, B_b2)
    return h2
```

```python
import re

VCC = (106, 107)
EXEC = (126, 127)
M0 = 124

_REG_RE = re.compile(r"^(-|abs\(|\|)?\s*([vsa])(\d+)\)?\|?$")
_RNG_RE = re.compile(r"^(-|abs\(|\|)?\s*([vsa])\[(\d+):(\d+)\]\)?\|?$")

TRANS = ("v_exp_f32", "v_log_f32", "v_rcp_f32", "v_rsq_f32", "v_sqrt_f32", "v_sin_f32", "v_cos_f32")


def parse_reg(tok):
    tok = tok.strip()
    m = _REG_RE.match(tok)
    if m:
        return m.group(2), [int(m.group(3))]
    m = _RNG_RE.match(tok)
    if m:
        return m.group(2), list(range(int(m.group(3)), int(m.group(4)) + 1))
    if tok == "vcc":
        return "s", list(VCC)
    if tok == "vcc_lo":
        return "s", [106]
    if tok == "vcc_hi":
        return "s", [107]
    if tok == "exec":
        return "s", list(EXEC)
    if tok == "exec_lo":
        return "s", [126]
    if tok == "exec_hi":
        return "s", [127]
    if tok == "m0":
        return "s", [M0]
    return None, []


def split_ops(s):
    out, depth, cur = [], 0, ""
    for ch in s:
        if ch in "[(":
            depth += 1
        if ch in "])":
            depth -= 1
        if ch == "," and depth == 0:
            out.append(cur.strip())
            cur = ""
        else:
            cur += ch
    if cur.strip():
        out.append(cur.strip())
    return out


class Ins:
    __slots__ = ("text", "mn", "ops", "mods", "cls", "vdef", "vuse", "sdef", "suse", "dpp", "trans", "dot",
                 "swap", "passes", "when", "target", "comment", "is_load", "is_store", "wide_store", "readlane",
                 "lanesel", "mfma_c", "mfma_ab")

    def __repr__(self):
        return self.text


class Label:
    def __init__(self, name):
        self.name = name


class Raw:
    def __init__(self, text):
        self.text = text


def make_ins(text, when=None):
    i = Ins()
    i.text = text
    i.when = when
    body = text.split(";")[0].strip()
    parts = body.split(None, 1)
    mn = parts[0]
    i.mn = mn
    rest = parts[1] if len(parts) > 1 else ""
    ops = split_ops(rest)
    mods = []
    if ops:
        last = ops[-1].split()
        if len(last) > 1:
            ops[-1] = last[0]
            mods = last[1:]
    i.ops = ops
    i.mods = mods
    i.vdef, i.vuse, i.sdef, i.suse = set(), set(), set(), set()
    i.dpp = any(m.startswith(("row_", "quad_perm")) for m in mods) or mn.endswith("_dpp")
    base = mn.replace("_e32", "").replace("_e64", "").replace("_dpp", "")
    i.trans = base in TRANS
    i.dot = base.startswith("v_dot")
    i.swap = base.startswith("v_permlane") and "swap" in base
    i.passes = 0
    i.target = None
    i.is_load = i.is_store = i.wide_store = False
    i.readlane = base in ("v_readlane_b32", "v_readfirstlane_b32")
    i.lanesel = set()
    i.mfma_c = set()
    i.mfma_ab = set()

    def add(kind_idx, defs):
        k, idx = kind_idx
        if k == "v" or k == "a":
            (i.vdef if defs else i.vuse).update(idx)
        elif k == "s":
            (i.sdef if defs else i.suse).update(idx)

    def R(n):
        return parse_reg(ops[n])

    if mn.startswith("v_mfma"):
        i.cls = "mfma"
        add(R(0), True)
        for n in (1, 2):
            add(R(n), False)
            i.mfma_ab.update(R(n)[1])
        if parse_reg(ops[3])[0]:
            add(R(3), False)
            i.mfma_c.update(R(3)[1])
        i.passes = 4 if "16x16" in mn else 8
    elif mn.startswith("v_"):
        i.cls = "valu"
        if base.startswith("v_cmpx"):
            raise ValueError("v_cmpx not supported by the checker")
        if i.swap:
            for n in (0, 1):
                add(R(n), True)
                add(R(n), False)
        elif base in ("v_add_co_u32", "v_sub_co_u32", "v_subrev_co_u32"):
            add(R(0), True)
            add(R(1), True)
            for n in range(2, len(ops)):
                add(R(n), False)
        elif base in ("v_addc_co_u32", "v_subb_co_u32"):
            add(R(0), True)
            add(R(1), True)
            for n in range(2, len(ops)):
                add(R(n), False)
        elif base == "v_nop":
            pass
        else:
            add(R(0), True)
            for n in range(1, len(ops)):
                add(R(n), False)
            if base.startswith(("v_fmac", "v_dot2c", "v_mac", "v_writelane")) or (i.dpp and not all(
                    x in mods for x in ("row_mask:0xf", "bank_mask:0xf"))):
                add(R(0), False)
            if base == "v_readlane_b32":
                k, idx = R(2)
                if k == "s":
                    i.lanesel.update(idx)
    elif mn.startswith(("global_", "buffer_", "flat_")):
        i.cls = "vmem"
        if mn.startswith(("buffer_wbl2", "buffer_inv")):
            pass
        elif "_load" in mn:
            i.is_load = True
            add(R(0), True)
            for n in range(1, len(ops)):
                add(R(n), False)
        elif "_store" in mn:
            i.is_store = True
            for n in range(len(ops)):
                add(R(n), False)
            data = R(1) if mn.startswith("global_") else R(0)
            i.wide_store = len(data[1]) >= 3
        elif "_atomic" in mn:
            ret = "sc0" in mods
            start = 0
            if ret:
                i.is_load = True
                add(R(0), True)
                start = 1
            else:
                i.is_store = True
            for n in range(start, len(ops)):
                add(R(n), False)
        else:
            raise ValueError("unknown vmem " + mn)
    elif mn.startswith("ds_"):
        i.cls = "ds"
        if mn.startswith(("ds_read", "ds_bpermute", "ds_permute", "ds_swizzle")):
            i.is_load = True
            add(R(0), True)
            for n in range(1, len(ops)):
                add(R(n), False)
        else:
            i.is_store = True
            for n in range(len(ops)):
                add(R(n), False)
    elif mn.startswith(("s_load", "s_memtime", "s_memrealtime")):
        i.cls = "smem"
        i.is_load = True
        add(R(0), True)
        if len(ops) > 1:
            add(R(1), False)
    elif mn in ("s_waitcnt", "s_barrier", "s_nop", "s_endpgm", "s_sleep", "s_setprio"):
        i.cls = "ctl"
    elif mn == "s_branch" or mn.startswith("s_cbranch"):
        i.cls = "br"
        i.target = ops[0]
        if "vcc" in mn:
            i.suse.update(VCC)
        if "exec" in mn:
            i.suse.update(EXEC)
    elif mn.startswith("s_"):
        i.cls = "salu"
        if mn.startswith(("s_cmp", "s_bitcmp")):
            for n in range(len(ops)):
                add(R(n), False)
        elif "saveexec" in mn:
            add(R(0), True)
            add(R(1), False)
            i.sdef.update(EXEC)
            i.suse.update(EXEC)
        elif mn == "s_getreg_b32":
            add(R(0), True)
        else:
            add(R(0), True)
            for n in range(1, len(ops)):
                add(R(n), False)
            if mn.startswith(("s_addk", "s_mulk", "s_cmov")):
                add(R(0), False)
    else:
        raise ValueError("unknown instruction: " + text)
    return i


MFMA_D_VALU = {2: 5, 4: 8, 8: 12, 16: 20}
MFMA_D_C_OVL = {2: 4, 4: 6, 8: 10, 16: 18}
MFMA_C_WAR = {2: 1, 4: 3, 8: 7, 16: 15}


def nop_states(i):
    if i.mn == "s_nop":
        return int(i.ops[0], 0) + 1
    return 1


class Asm:
    def __init__(self):
        self.items = []
        self._lab = 0

    def I(self, text, when=None):
        for line in text.strip().split("\n"):
            line = line.strip()
            if not line or line.startswith(";"):
                if line:
                    self.items.append(Raw("    " + line))
                continue
            self.items.append(make_ins(line, when))
        return self

    def label(self, name):
        self.items.append(Label(name))

    def comment(self, text):
        self.items.append(Raw("    ; " + text))

    def raw(self, text):
        self.items.append(Raw(text))

    def newlabel(self, stem="L"):
        self._lab += 1
        return f"{stem}_{self._lab}"

    def _hazard_need(self, p, c):
        need = 0
        p_valu = p.cls == "valu"
        c_valu = c.cls == "valu"
        if p_valu:
            wv = p.vdef
            ws = p.sdef
            if wv:
                if c_valu and c.dpp and (wv & c.vuse):
                    need = max(need, 2)
                if c_valu and c.readlane and (wv & c.vuse):
                    need = max(need, 1)
                if c_valu and c.swap and (wv & (c.vuse | c.vdef)):
                    need = max(need, 2)
                if c.cls == "mfma" and (wv & c.vuse):
                    need = max(need, 2)
                if p.trans and c_valu and not c.trans and (wv & (c.vuse | c.vdef)):
                    need = max(need, 1)
                if p.dot:
                    if c.cls in ("valu", "mfma", "vmem", "ds") and (wv & (c.vuse | c.vdef)):
                        same = c.mn == p.mn
                        if same:
                            ab = set()
                            for n in (1, 2):
                                ab.update(parse_reg(c.ops[n])[1])
                            if wv & ab:
                                need = max(need, 3)
                        else:
                            need = max(need, 3)
            if ws:
                if c_valu and (ws & c.suse):
                    need = max(need, 2)
                    if ws & c.lanesel:
                        need = max(need, 4)
                if c.cls == "vmem" and (ws & c.suse):
                    need = max(need, 5)
                if c.cls == "valu" and c.mn.startswith("v_div_fmas") and (ws & set(VCC)):
                    need = max(need, 4)
        if p.cls == "mfma":
            d = p.vdef
            if c.cls == "mfma":
                if d & c.mfma_ab:
                    need = max(need, MFMA_D_VALU[p.passes])
                if d & c.mfma_c:
                    if d == c.mfma_c and c.passes == p.passes:
                        need = max(need, 0 if p.passes >= 4 else 2)
                    else:
                        need = max(need, MFMA_D_C_OVL[p.passes])
                if (d & c.vdef) and not (d & c.mfma_c):
                    need = max(need, MFMA_D_VALU[p.passes])
            elif c.cls in ("valu", "vmem", "ds"):
                if d & (c.vuse | c.vdef):
                    need = max(need, MFMA_D_VALU[p.passes])
            if c_valu and (p.mfma_c & c.vdef):
                need = max(need, MFMA_C_WAR[p.passes])
        if p.cls == "vmem" and p.wide_store:
            data = parse_reg(p.ops[1] if p.mn.startswith("global_") else p.ops[0])[1]
            if set(data) & c.vdef:
                need = max(need, 2 if c_valu else 1)
        return need

    def resolve_hazards(self, window=24):
        items = self.items
        changed = True
        rounds = 0
        while changed:
            changed = False
            rounds += 1
            labidx = {it.name: k for k, it in enumerate(items) if isinstance(it, Label)}
            br_to = {}
            for k, it in enumerate(items):
                if isinstance(it, Ins) and it.target is not None:
                    br_to.setdefault(labidx[it.target], []).append(k)
            k = 0
            while k < len(items):
                it = items[k]
                if isinstance(it, Ins) and it.cls not in ("ctl", "br"):
                    need = self._scan_back(items, br_to, k, it, window)
                    if need > 0:
                        while need > 0:
                            n = min(need, 8)
                            items.insert(k, make_ins(f"s_nop {n-1}"))
                            need -= n
                            k += 1
                        changed = True
                        break
                k += 1
        return rounds

    def _scan_back(self, items, br_to, k, c, window):
        best = 0
        stack = [(k - 1, 0)]
        seen = {}
        while stack:
            j, dist = stack.pop()
            while j >= 0 and dist < window:
                if seen.get(j, 1 << 30) <= dist:
                    break
                seen[j] = dist
                it = items[j]
                if isinstance(it, Label):
                    for b in br_to.get(j, []):
                        stack.append((b, dist))
                    j -= 1
                    continue
                if isinstance(it, Raw):
                    j -= 1
                    continue
                if it.mn in ("s_branch", "s_endpgm") and not self._arrived_by_branch(stack, j, seen):
                    pass
                need = self._hazard_need(it, c)
                if need - dist > best:
                    best = need - dist
                dist += nop_states(it)
                pj = j - 1
                while pj >= 0 and isinstance(items[pj], Raw):
                    pj -= 1
                if pj >= 0 and isinstance(items[pj], Ins) and items[pj].mn in ("s_branch", "s_endpgm"):
                    break
                j -= 1
        return best

    @staticmethod
    def _arrived_by_branch(stack, j, seen):
        return True

    def verify(self, contexts, init_v=(0,), init_s=(0, 1, 2), verbose=False):
        items = self.items
        labidx = {it.name: k for k, it in enumerate(items) if isinstance(it, Label)}
        results = {}
        errors = []
        for ctx in contexts:
            ctx = dict(ctx)
            name = ctx.get("name", str(ctx))
            visits = {}
            wv, ws_ = set(init_v), set(init_s) | set(EXEC) | set(VCC)
            vmq = []
            lgq = []
            nbar = 0
            k = 0
            steps = 0
            while True:
                steps += 1
                if steps > 200000:
                    errors.append(f"[{name}] runaway path")
                    break
                if k >= len(items):
                    errors.append(f"[{name}] ran past the end")
                    break
                it = items[k]
                if not isinstance(it, Ins):
                    k += 1
                    continue
                pend_v = set().union(*[q for q in vmq]) if vmq else set()
                pend_lv = set().union(*[q[1] for q in lgq if q[0] == "ds"]) if lgq else set()
                pend_ls = set().union(*[q[1] for q in lgq if q[0] == "smem"]) if lgq else set()
                tv = it.vuse | it.vdef
                if tv & pend_v:
                    errors.append(f"[{name}] line {k}: '{it.text}' touches VGPR {sorted(tv & pend_v)} with a vmem load in flight")
                if tv & pend_lv:
                    errors.append(f"[{name}] line {k}: '{it.text}' touches VGPR {sorted(tv & pend_lv)} with a ds read in flight")
                ts = it.suse | it.sdef
                if ts & pend_ls:
                    errors.append(f"[{name}] line {k}: '{it.text}' touches SGPR {sorted(ts & pend_ls)} with an s_load in flight")
                un = it.vuse - wv
                if un:
                    errors.append(f"[{name}] line {k}: '{it.text}' reads unwritten VGPR {sorted(un)}")
                un = it.suse - ws_
                if un:
                    errors.append(f"[{name}] line {k}: '{it.text}' reads unwritten SGPR {sorted(un)}")
                wv |= it.vdef
                ws_ |= it.sdef
                if it.cls == "vmem":
                    vmq.append(set(it.vdef))
                    if len(vmq) > 63:
                        errors.append(f"[{name}] line {k}: more than 63 vmem ops outstanding")
                elif it.cls == "ds":
                    lgq.append(("ds", set(it.vdef)))
                    if len(lgq) > 15:
                        pass
                elif it.cls == "smem":
                    lgq.append(("smem", set(it.sdef)))
                if it.mn == "s_waitcnt":
                    body = it.text.split(";")[0]
                    m = re.search(r"vmcnt\((\d+)\)", body)
                    if m:
                        n = int(m.group(1))
                        while len(vmq) > n:
                            vmq.pop(0)
                    m = re.search(r"lgkmcnt\((\d+)\)", body)
                    if m:
                        n = int(m.group(1))
                        if any(q[0] == "smem" for q in lgq) and n != 0:
                            errors.append(f"[{name}] line {k}: counted lgkmcnt with SMEM outstanding")
                        while len(lgq) > n:
                            lgq.pop(0)
                if it.mn == "s_barrier":
                    nbar += 1
                    if any(q[0] == "ds" for q in lgq):
                        errors.append(f"[{name}] line {k}: s_barrier with LDS ops outstanding")
                if it.mn == "s_endpgm":
                    break
                if it.cls == "br":
                    taken = True
                    if it.mn != "s_branch":
                        if it.when is None:
                            errors.append(f"[{name}] line {k}: conditional branch without 'when'")
                            taken = False
                        else:
                            cnt = visits.get(k, 0)
                            visits[k] = cnt + 1
                            taken = bool(it.when(ctx, cnt))
                    if taken:
                        k = labidx[it.target]
                        continue
                k += 1
            results[name] = nbar
        return results, errors

    def text(self):
        out = []
        for it in self.items:
            if isinstance(it, Label):
                out.append(f"{it.name}:")
            elif isinstance(it, Raw):
                out.append(it.text)
            else:
                out.append("    " + it.text)
        return "\n".join(out) + "\n"

    def count(self):
        return sum(1 for it in self.items if isinstance(it, Ins))
```

```python
import argparse
import sys

sys.path.insert(0, "dev")
from asmlib import Asm

NAME = "sequential_preLN__sliding_block_cached__dense_activation_squared_relu__decode"
KERNEL = NAME + "_kernel"

QPART, QBF, WSTAT, GSTAT, PLDS, OPART, RED, HBUF, ABUF = 0, 8192, 8448, 8512, 8576, 9600, 13696, 14208, 16256
LDS_BYTES = 17408

MB_O, MB_STAT, MB_ATT, MB_G = 0, 512, 640, 768

SPIN = 30000
N_F1 = 86
N_F2 = 32

sW, sG, sC, sHL, sS, sH, sKW = 3, 4, 5, 6, 7, 8, 9
sMB = 10
sTMP = 12
sSELLO, sSELHI = 14, 15
pX, pKC, pVC, pWQ, pWO, pBX, pW1, pB1, pW2, pB2, pOUT, pDBG, pWS = 16, 18, 20, 22, 24, 26, 28, 30, 32, 34, 36, 38, 40
sKVB, sWQB = 42, 44
sM3, sM2, sM1, sM0 = 46, 48, 50, 52
sA, sB, sSPIN, sT = 54, 55, 56, 57
sPB = 58
sX0, sX1 = 74, 76

LOG2E = "0x3fb8aa3b"
SCALE = "0x3db504f3"


class G:
    def __init__(self, stop_after=None, dbg=False, kv_nt=True):
        self.a = Asm()
        self.stop_after = stop_after
        self.dbg = dbg
        self.kv_nt = kv_nt
        self._tmpbase = None

    def I(self, t, when=None):
        self.a.I(t, when)

    def RB(self, v):
        self.I(f"v_cvt_pk_bf16_f32 v{v}, v{v}, v{v}")
        self.I(f"v_lshlrev_b32 v{v}, 16, v{v}")

    def wave_reduce(self, op, v, sdst):
        for n in (8, 4, 2, 1):
            self.I(f"v_{op}_f32_dpp v{v}, v{v}, v{v} row_ror:{n} row_mask:0xf bank_mask:0xf")
        self.I(f"v_{op}_f32_dpp v{v}, v{v}, v{v} row_bcast:15 row_mask:0xa bank_mask:0xf")
        self.I(f"v_{op}_f32_dpp v{v}, v{v}, v{v} row_bcast:31 row_mask:0xc bank_mask:0xf")
        self.I(f"v_readlane_b32 s{sdst}, v{v}, 63")

    def reset_tmpbase(self):
        self._tmpbase = None

    def vmem(self, op, data, voff, sbase, off, mods="", store=False):
        sb = sbase
        if not (-4096 <= off <= 4095):
            lo = off % 4096
            hi = off - lo
            if self._tmpbase != (sbase, hi):
                self.I(f"s_add_u32 s{sTMP}, s{sbase}, {hi}")
                self.I(f"s_addc_u32 s{sTMP+1}, s{sbase+1}, 0")
                self._tmpbase = (sbase, hi)
            sb, off = sTMP, lo
        o = f" offset:{off}" if off else ""
        m = (" " + mods) if mods else ""
        if store:
            self.I(f"{op} v{voff}, {data}, s[{sb}:{sb+1}]{o}{m}")
        else:
            self.I(f"{op} {data}, v{voff}, s[{sb}:{sb+1}]{o}{m}")

    def tree_sum(self, regs, dst):
        regs = list(regs)
        while len(regs) > 1:
            nxt = []
            for k in range(0, len(regs) - 1, 2):
                self.I(f"v_add_f32 v{regs[k]}, v{regs[k]}, v{regs[k+1]}")
                nxt.append(regs[k])
            if len(regs) % 2:
                nxt.append(regs[-1])
            regs = nxt
        if regs[0] != dst:
            self.I(f"v_mov_b32 v{dst}, v{regs[0]}")

    def poll(self, stem, emit_loads, check_regs, tmp):
        La, Ld = self.a.newlabel(stem), self.a.newlabel(stem + "_ok")
        self.I(f"s_mov_b32 s{sSPIN}, {SPIN}")
        self.a.label(La)
        self.reset_tmpbase()
        emit_loads()
        self.I("s_waitcnt vmcnt(0)")
        regs = list(check_regs)
        first = True
        k = 0
        while k < len(regs):
            if first:
                if len(regs) - k >= 3:
                    self.I(f"v_max3_u32 v{tmp}, v{regs[k]}, v{regs[k+1]}, v{regs[k+2]}")
                    k += 3
                elif len(regs) - k == 2:
                    self.I(f"v_max_u32 v{tmp}, v{regs[k]}, v{regs[k+1]}")
                    k += 2
                else:
                    self.I(f"v_mov_b32 v{tmp}, v{regs[k]}")
                    k += 1
                first = False
            else:
                if len(regs) - k >= 2:
                    self.I(f"v_max3_u32 v{tmp}, v{tmp}, v{regs[k]}, v{regs[k+1]}")
                    k += 2
                else:
                    self.I(f"v_max_u32 v{tmp}, v{tmp}, v{regs[k]}")
                    k += 1
        self.I(f"v_cmp_eq_u32 vcc, -1, v{tmp}")
        self.I(f"s_cbranch_vccz {Ld}", when=lambda ctx, cnt: cnt >= 1)
        self.I(f"s_sub_u32 s{sSPIN}, s{sSPIN}, 1")
        self.I(f"s_cmp_lg_u32 s{sSPIN}, 0")
        self.I(f"s_cbranch_scc1 {La}", when=lambda ctx, cnt: True)
        self.a.label(Ld)
        self.reset_tmpbase()

    def barrier(self, tag):
        self.I(f"s_barrier ; {tag}")

    def pair_dot(self, acc, A, B, P, first, L, H):
        for t in range(4):
            self.I(f"v_perm_b32 v{L}, v{B+t}, v{A+t}, s{sSELLO}")
            self.I(f"v_perm_b32 v{H}, v{B+t}, v{A+t}, s{sSELHI}")
            c0 = "0" if first else f"v{acc+2*t}"
            c1 = "0" if first else f"v{acc+2*t+1}"
            self.I(f"v_dot2_f32_bf16 v{acc+2*t}, v{L}, v{P}, {c0}")
            self.I(f"v_dot2_f32_bf16 v{acc+2*t+1}, v{H}, v{P}, {c1}")
            L, H = L ^ 2, H ^ 2

    def r_reduce(self, acc, U):
        for j in range(4):
            self.I(f"v_permlane32_swap_b32 v{acc+j}, v{acc+j+4}")
        for j in range(4):
            self.I(f"v_add_f32 v{acc+j}, v{acc+j}, v{acc+j+4}")
        for j in range(2):
            self.I(f"v_permlane16_swap_b32 v{acc+j}, v{acc+j+2}")
        self.I(f"v_add_f32 v{U}, v{acc}, v{acc+2}")
        self.I(f"v_add_f32 v{U+1}, v{acc+1}, v{acc+3}")

    def merge8(self, M, L, T, D):
        self.I(f"v_mov_b32 v{T}, v{M}")
        for pat in ("quad_perm:[1,0,3,2]", "quad_perm:[2,3,0,1]", "row_half_mirror"):
            self.I(f"v_max_f32_dpp v{T}, v{T}, v{T} {pat} row_mask:0xf bank_mask:0xf")
        self.I(f"v_sub_f32 v{D}, v{M}, v{T}")
        self.I(f"v_mul_f32 v{D}, {LOG2E}, v{D}")
        self.I(f"v_exp_f32 v{D}, v{D}")
        self.I(f"v_mul_f32 v{L}, v{L}, v{D}")
        for pat in ("quad_perm:[1,0,3,2]", "quad_perm:[2,3,0,1]", "row_half_mirror"):
            self.I(f"v_add_f32_dpp v{L}, v{L}, v{L} {pat} row_mask:0xf bank_mask:0xf")
        self.I(f"v_mov_b32 v{M}, v{T}")

    def ln_scalars(self, T8, S, MEAN, VV, SD, RC):
        self.I(f"v_add_f32 v{S}, v{T8}, v{T8+1}")
        self.I(f"v_add_f32 v{VV}, v{T8+2}, v{T8+3}")
        self.I(f"v_add_f32 v{MEAN}, v{T8+4}, v{T8+5}")
        self.I(f"v_add_f32 v{SD}, v{T8+6}, v{T8+7}")
        self.I(f"v_add_f32 v{S}, v{S}, v{VV}")
        self.I(f"v_add_f32 v{MEAN}, v{MEAN}, v{SD}")
        self.I(f"v_add_f32 v{S}, v{S}, v{MEAN}")
        self.wave_reduce("add", S, sA)
        self.I(f"v_mov_b32 v{MEAN}, s{sA}")
        self.I(f"v_mul_f32 v{MEAN}, 0x3b000000, v{MEAN}")
        for k in range(8):
            self.I(f"v_sub_f32 v{T8+k}, v{T8+k}, v{MEAN}")
        self.I(f"v_mul_f32 v{S}, v{T8}, v{T8}")
        for k in range(1, 8):
            self.I(f"v_fma_f32 v{S}, v{T8+k}, v{T8+k}, v{S}")
        self.wave_reduce("add", S, sA)
        self.I(f"v_mov_b32 v{VV}, s{sA}")
        self.I(f"v_mul_f32 v{VV}, 0x3b000000, v{VV}")
        self.RB(VV)
        self.I(f"v_add_f32 v{VV}, 0x3727c5ac, v{VV}")
        self.RB(VV)
        self.I(f"v_sqrt_f32 v{SD}, v{VV}")
        self.RB(SD)
        self.I(f"v_rcp_f32 v{RC}, v{SD}")
        self.RB(MEAN)

    def ln_apply(self, X, Y, E, MEAN, SD, RC):
        self.I(f"v_sub_f32 v{X}, v{X}, v{MEAN}")
        self.RB(X)
        self.I(f"v_mul_f32 v{Y}, v{X}, v{RC}")
        self.I(f"v_fma_f32 v{E}, -v{Y}, v{SD}, v{X}")
        self.I(f"v_fma_f32 v{X}, v{E}, v{RC}, v{Y}")

    def dbg_store(self, op, voff, data, off):
        if self.dbg:
            self.vmem(op, data, voff, pWS, (1 << 20) + off, store=True)
            self.reset_tmpbase()

    def build(self):
        I, a = self.I, self.a
        vLANE, vR, vC16 = 1, 2, 3
        XA, XF, WQ, KV = 24, 28, 32, 64
        isK = lambda ctx: ctx["w"] < 8

        I("s_cmp_ge_u32 s2, 256")
        I("s_cbranch_scc1 L_end", when=lambda ctx, c: ctx["id"] >= 256)
        I(f"s_load_dwordx16 s[16:31], s[0:1], 0")
        I(f"s_load_dwordx8 s[32:39], s[0:1], 64")
        I(f"s_load_dwordx2 s[40:41], s[0:1], 96")
        I(f"v_and_b32 v{vLANE}, 63, v0")
        I(f"v_lshrrev_b32 v4, 6, v0")
        I(f"v_lshrrev_b32 v{vR}, 4, v{vLANE}")
        I(f"v_and_b32 v{vC16}, 15, v{vLANE}")
        I(f"v_lshlrev_b32 v{vC16}, 4, v{vC16}")
        I(f"v_readfirstlane_b32 s{sW}, v4")
        I(f"s_and_b32 s{sG}, s2, 7")
        I(f"s_lshr_b32 s{sC}, s2, 3")
        I(f"s_and_b32 s{sHL}, s{sC}, 3")
        I(f"s_lshr_b32 s{sS}, s{sC}, 2")
        I(f"s_lshl_b32 s{sH}, s{sG}, 2")
        I(f"s_add_u32 s{sH}, s{sH}, s{sHL}")
        I(f"s_and_b32 s{sKW}, s{sW}, 7")
        I(f"s_mov_b32 s{sSELLO}, 0x05040100")
        I(f"s_mov_b32 s{sSELHI}, 0x07060302")
        vKVOFF, vWQOFF, vXAOFF, vXFOFF = 4, 5, 6, 7
        I(f"v_lshl_add_u32 v{vKVOFF}, v{vR}, 12, v{vC16}")
        I(f"v_lshl_add_u32 v{vWQOFF}, v{vR}, 16, v{vC16}")
        I(f"v_lshlrev_b32 v{vXAOFF}, 4, v{vLANE}")
        I(f"v_and_b32 v{vXFOFF}, 0xfffffff0, v0")
        I(f"s_lshl_b32 s{sA}, s{sH}, 23")
        I(f"s_add_u32 s{sA}, s{sA}, 0x700000")
        I(f"s_lshl_b32 s{sB}, s{sS}, 17")
        I(f"s_add_u32 s{sA}, s{sA}, s{sB}")
        I(f"s_lshl_b32 s{sB}, s{sKW}, 14")
        I(f"s_add_u32 s{sA}, s{sA}, s{sB}")
        I(f"s_lshl_b32 s{sB}, s{sH}, 8")
        I(f"s_lshl_b32 s{sT}, s{sW}, 18")
        I(f"s_add_u32 s{sB}, s{sB}, s{sT}")
        I("s_waitcnt lgkmcnt(0)")
        I(f"s_cmp_lt_u32 s{sW}, 8")
        I(f"s_cselect_b32 s{sKVB}, s{pKC}, s{pVC}")
        I(f"s_cselect_b32 s{sKVB+1}, s{pKC+1}, s{pVC+1}")
        I(f"s_add_u32 s{sKVB}, s{sKVB}, s{sA}")
        I(f"s_addc_u32 s{sKVB+1}, s{sKVB+1}, 0")
        I(f"s_add_u32 s{sWQB}, s{pWQ}, s{sB}")
        I(f"s_addc_u32 s{sWQB+1}, s{pWQ+1}, 0")
        I(f"s_lshl_b32 s{sA}, s2, 10")
        I(f"s_add_u32 s{sMB}, s{pWS}, s{sA}")
        I(f"s_addc_u32 s{sMB+1}, s{pWS+1}, 0")

        I(f"s_cmp_eq_u32 s{sW}, 0")
        I("s_cbranch_scc0 L_noclear", when=lambda ctx, c: ctx["w"] != 0)
        for k in range(4):
            I(f"v_mov_b32 v{8+k}, -1")
        I(f"global_store_dwordx4 v{vXAOFF}, v[8:11], s[{sMB}:{sMB+1}] sc1")
        a.label("L_noclear")

        I(f"global_load_dwordx4 v[{XA}:{XA+3}], v{vXAOFF}, s[{pX}:{pX+1}]")
        I(f"global_load_dwordx4 v[{XF}:{XF+3}], v{vXFOFF}, s[{pX}:{pX+1}]")
        self.reset_tmpbase()
        for i in range(8):
            self.vmem("global_load_dwordx4", f"v[{WQ+4*i}:{WQ+4*i+3}]", vWQOFF, sWQB, i * 8192)
        nt = "nt" if self.kv_nt else ""

        def kv_loads():
            for i in range(16):
                self.vmem("global_load_dwordx4", f"v[{KV+4*i}:{KV+4*i+3}]", vKVOFF, sKVB, i * 256, nt)

        I(f"s_cmp_lt_u32 s{sW}, 8")
        I("s_cbranch_scc0 L_v_pre", when=lambda ctx, c: not isK(ctx))
        kv_loads()
        self.barrier("B0")
        I("s_branch L_loads_done")
        a.label("L_v_pre")
        self.barrier("B0")
        kv_loads()
        a.label("L_loads_done")

        T8, S, MEAN, VV, SD, RC = 8, 16, 17, 18, 19, 20
        I("s_waitcnt vmcnt(24)")
        for t in range(4):
            I(f"v_lshlrev_b32 v{T8+2*t}, 16, v{XA+t}")
            I(f"v_and_b32 v{T8+2*t+1}, 0xffff0000, v{XA+t}")
        self.ln_scalars(T8, S, MEAN, VV, SD, RC)
        XP = 4
        for t in range(4):
            I(f"v_lshlrev_b32 v{T8+2*t}, 16, v{XF+t}")
            I(f"v_and_b32 v{T8+2*t+1}, 0xffff0000, v{XF+t}")
        for k in range(8):
            self.ln_apply(T8 + k, 21, 22, MEAN, SD, RC)
        for j in range(4):
            I(f"v_cvt_pk_bf16_f32 v{XP+j}, v{T8+2*j}, v{T8+2*j+1}")

        ACC = 8
        for jp in range(4):
            I(f"s_waitcnt vmcnt({16 + 6 - 2*jp})")
            self.pair_dot(ACC, WQ + 8 * jp, WQ + 8 * jp + 4, XP + jp, jp == 0, 16, 17)
        U = 20
        self.r_reduce(ACC, U)
        I(f"v_lshlrev_b32 v22, 1, v{vC16}")
        I(f"v_lshl_add_u32 v22, v{vR}, 3, v22")
        I(f"s_lshl_b32 s{sA}, s{sW}, 9")
        I(f"v_add_u32 v22, s{sA}, v22")
        I(f"ds_write_b64 v22, v[{U}:{U+1}] offset:{QPART}")
        I("s_waitcnt lgkmcnt(0)")
        self.barrier("B1")
        I(f"s_cmp_lt_u32 s{sW}, 2")
        I("s_cbranch_scc0 L_q_skip", when=lambda ctx, c: ctx["w"] >= 2)
        I("v_lshlrev_b32 v22, 2, v0")
        for k in range(16):
            I(f"ds_read_b32 v{32+k}, v22 offset:{QPART + 512*k}")
        I("s_waitcnt lgkmcnt(0)")
        self.tree_sum(range(32, 48), 8)
        I("v_cvt_pk_bf16_f32 v8, v8, v8")
        I("v_lshlrev_b32 v22, 1, v0")
        I(f"ds_write_b16 v22, v8 offset:{QBF}")
        if self.dbg:
            I("v_lshlrev_b32 v9, 16, v8")
            I("v_lshlrev_b32 v22, 2, v0")
            I(f"s_lshl_b32 s{sA}, s2, 9")
            I(f"v_add_u32 v22, s{sA}, v22")
            self.dbg_store("global_store_dword", 22, "v9", 0)
        I("s_waitcnt lgkmcnt(0)")
        a.label("L_q_skip")
        self.barrier("B2")
        I(f"s_cmp_lt_u32 s{sW}, 8")
        I("s_cbranch_scc0 L_vpath", when=lambda ctx, c: not isK(ctx))

        Q, SC0 = 4, 32
        I(f"ds_read_b128 v[{Q}:{Q+3}], v{vC16} offset:{QBF}")
        I("s_mov_b64 exec, 1")
        I("v_mov_b32 v8, s2")
        I("v_mov_b32 v9, 1")
        I("v_mov_b32 v10, 0")
        I(f"s_cmp_eq_u32 s{sW}, 0")
        I("s_cbranch_scc0 L_dummy", when=lambda ctx, c: ctx["w"] != 0)
        I(f"global_store_byte v8, v9, s[{pDBG}:{pDBG+1}] sc1")
        I("s_branch L_dummy_join")
        a.label("L_dummy")
        I(f"global_load_dword v25, v10, s[{pX}:{pX+1}]")
        a.label("L_dummy_join")
        I("s_mov_b64 exec, -1")
        for bit, sm in ((8, sM3), (4, sM2), (2, sM1), (1, sM0)):
            I(f"v_and_b32 v12, {bit}, v{vLANE}")
            I(f"v_cmp_ne_u32 s[{sm}:{sm+1}], 0, v12")
        I("s_waitcnt lgkmcnt(0)")
        for i in range(16):
            I(f"s_waitcnt vmcnt({15 - i + 1})")
            k0 = KV + 4 * i
            I(f"v_dot2_f32_bf16 v{SC0+i}, v{k0}, v{Q}, 0")
            for t in range(1, 4):
                I(f"v_dot2_f32_bf16 v{SC0+i}, v{k0+t}, v{Q+t}, v{SC0+i}")
        cur = [SC0 + i for i in range(16)]
        tmpk = 48
        for step, (sm, pat) in enumerate(((sM3, "row_mirror"), (sM2, "row_half_mirror"),
                                          (sM1, "quad_perm:[3,2,1,0]"), (sM0, "quad_perm:[1,0,3,2]"))):
            h = len(cur) // 2
            nxt = []
            for i in range(h):
                lo_, hi_ = cur[i], cur[i + h]
                I(f"v_cndmask_b32 v{tmpk+i}, v{hi_}, v{lo_}, s[{sm}:{sm+1}]")
            for i in range(h):
                lo_, hi_ = cur[i], cur[i + h]
                I(f"v_cndmask_b32 v{lo_}, v{lo_}, v{hi_}, s[{sm}:{sm+1}]")
            for i in range(h):
                lo_ = cur[i]
                I(f"v_add_f32_dpp v{lo_}, v{tmpk+i}, v{lo_} {pat} row_mask:0xf bank_mask:0xf")
                nxt.append(lo_)
            cur = nxt
        RAW = cur[0]
        SC, E = 8, 9
        I(f"v_mov_b32 v{SC}, v{RAW}")
        self.RB(SC)
        I(f"v_mul_f32 v{SC}, {SCALE}, v{SC}")
        self.RB(SC)
        if self.dbg:
            I("v_lshlrev_b32 v22, 2, v0")
            I(f"s_lshl_b32 s{sA}, s2, 11")
            I(f"v_add_u32 v22, s{sA}, v22")
            self.dbg_store("global_store_dword", 22, f"v{SC}", 1 << 17)
        I(f"v_mov_b32 v10, v{SC}")
        self.wave_reduce("max", 10, sA)
        I(f"v_subrev_f32 v{E}, s{sA}, v{SC}")
        I(f"v_mul_f32 v{E}, {LOG2E}, v{E}")
        I(f"v_exp_f32 v{E}, v{E}")
        I(f"v_mov_b32 v10, v{E}")
        self.wave_reduce("add", 10, sB)
        I(f"v_mov_b32 v10, s{sA}")
        I(f"v_mov_b32 v11, s{sB}")
        I(f"s_lshl_b32 s{sT}, s{sW}, 3")
        I(f"v_mov_b32 v12, s{sT}")
        I("s_mov_b64 exec, 1")
        I(f"ds_write_b64 v12, v[10:11] offset:{WSTAT}")
        I("s_mov_b64 exec, -1")
        I("s_waitcnt lgkmcnt(0)")
        self.barrier("B3")
        I(f"s_cmp_eq_u32 s{sW}, 0")
        I("s_cbranch_scc0 L_stat_skip", when=lambda ctx, c: ctx["w"] != 0)
        I(f"v_and_b32 v12, 7, v{vLANE}")
        I("v_lshlrev_b32 v13, 3, v12")
        I(f"ds_read_b64 v[10:11], v13 offset:{WSTAT}")
        I("s_waitcnt lgkmcnt(0)")
        self.merge8(10, 11, 14, 15)
        I("v_mov_b32 v13, 0")
        I("s_mov_b64 exec, 1")
        I(f"global_store_dwordx2 v13, v[10:11], s[{sMB}:{sMB+1}] offset:{MB_STAT} sc1")
        I("s_mov_b64 exec, -1")
        Lf, Lfd = "L_flag_poll", "L_flag_ok"
        I(f"v_lshlrev_b32 v13, 2, v{vLANE}")
        I(f"s_mov_b32 s{sSPIN}, {SPIN}")
        a.label(Lf)
        I(f"global_load_dword v14, v13, s[{pDBG}:{pDBG+1}] sc1")
        I("s_waitcnt vmcnt(0)")
        I("v_cmp_ne_u32 vcc, 0x01010101, v14")
        I(f"s_cbranch_vccz {Lfd}", when=lambda ctx, c: c >= 1)
        I(f"s_sub_u32 s{sSPIN}, s{sSPIN}, 1")
        I(f"s_cmp_lg_u32 s{sSPIN}, 0")
        I(f"s_cbranch_scc1 {Lf}", when=lambda ctx, c: True)
        a.label(Lfd)
        I(f"s_lshl_b32 s{sA}, s{sHL}, 13")
        I(f"s_lshl_b32 s{sB}, s{sG}, 10")
        I(f"s_add_u32 s{sA}, s{sA}, s{sB}")
        I(f"s_add_u32 s{sX0}, s{pWS}, s{sA}")
        I(f"s_addc_u32 s{sX0+1}, s{pWS+1}, 0")
        I("v_lshlrev_b32 v13, 15, v12")
        self.poll("L_stat_poll",
                  lambda: I(f"global_load_dwordx2 v[10:11], v13, s[{sX0}:{sX0+1}] offset:{MB_STAT} sc1"),
                  [10, 11], 14)
        self.merge8(10, 11, 14, 15)
        I("v_rcp_f32 v11, v11")
        I("v_mov_b32 v13, 0")
        I("s_mov_b64 exec, 1")
        I(f"ds_write_b64 v13, v[10:11] offset:{GSTAT}")
        I("s_mov_b64 exec, -1")
        I("s_waitcnt lgkmcnt(0)")
        a.label("L_stat_skip")
        self.barrier("B4")
        I("v_mov_b32 v13, 0")
        I(f"ds_read_b64 v[10:11], v13 offset:{GSTAT}")
        I("s_waitcnt lgkmcnt(0)")
        I(f"v_sub_f32 v{E}, v{SC}, v10")
        I(f"v_mul_f32 v{E}, {LOG2E}, v{E}")
        I(f"v_exp_f32 v{E}, v{E}")
        I(f"v_mul_f32 v{E}, v{E}, v11")
        I(f"v_cvt_pk_bf16_f32 v{E}, v{E}, v{E}")
        I("v_lshlrev_b32 v13, 1, v0")
        I(f"ds_write_b16 v13, v{E} offset:{PLDS}")
        I("s_waitcnt vmcnt(0) lgkmcnt(0)")
        self.barrier("B5")

        XT, B1F, B2F, HT = 4, 5, 6, 7
        W2F, WOF, W1F, TMPW = 8, 112, 120, 32
        vWOFF, vW1OFF = 2, 3
        vQ, vN = 110, 111
        tQ, tN = 98, 99
        I(f"v_lshrrev_b32 v{tQ}, 4, v{vLANE}")
        I(f"v_and_b32 v{tN}, 15, v{vLANE}")
        I(f"v_lshlrev_b32 v{vWOFF}, 13, v{tQ}")
        I(f"v_lshl_add_u32 v{vWOFF}, v{tN}, 1, v{vWOFF}")
        I(f"v_mul_u32_u24 v{vW1OFF}, {8*2752}, v{tQ}")
        I(f"v_lshl_add_u32 v{vW1OFF}, v{tN}, 1, v{vW1OFF}")
        I(f"s_lshl_b32 s{sA}, s{sG}, 19")
        I(f"s_lshl_b32 s{sB}, s{sKW}, 16")
        I(f"s_add_u32 s{sA}, s{sA}, s{sB}")
        I(f"s_lshl_b32 s{sB}, s{sC}, 5")
        I(f"s_add_u32 s{sA}, s{sA}, s{sB}")
        I(f"s_add_u32 s{sX0}, s{pWO}, s{sA}")
        I(f"s_addc_u32 s{sX0+1}, s{pWO+1}, 0")
        self.reset_tmpbase()
        T_WO, T_W1, T_W2 = TMPW, TMPW + 16, TMPW + 32
        for z in range(2):
            for i in range(8):
                self.vmem("global_load_ushort", f"v{T_WO+8*z+i}", vWOFF, sX0, (32 * z + i) * 1024)
        I(f"s_cmp_ge_u32 s2, {N_F1}")
        I("s_cbranch_scc1 L_w_done", when=lambda ctx, c: ctx["id"] >= N_F1)
        I("v_lshlrev_b32 v100, 1, v0")
        I(f"global_load_ushort v{XT}, v100, s[{pX}:{pX+1}]")
        I(f"s_lshl_b32 s{sA}, s2, 5")
        I(f"v_lshl_add_u32 v101, v{tN}, 1, s{sA}")
        I(f"global_load_ushort v{B1F}, v101, s[{pB1}:{pB1+1}]")
        I(f"s_mul_i32 s{sB}, s{sKW}, {64*2752}")
        I(f"s_add_u32 s{sA}, s{sA}, s{sB}")
        I(f"s_add_u32 s{sX0}, s{pW1}, s{sA}")
        I(f"s_addc_u32 s{sX0+1}, s{pW1+1}, 0")
        self.reset_tmpbase()
        for z in range(2):
            for i in range(8):
                self.vmem("global_load_ushort", f"v{T_W1+8*z+i}", vW1OFF, sX0, (32 * z + i) * 2752)
        I(f"s_cmp_ge_u32 s2, {N_F2}")
        I("s_cbranch_scc1 L_w_done", when=lambda ctx, c: ctx["id"] >= N_F2)
        I(f"global_load_ushort v{B2F}, v101, s[{pB2}:{pB2+1}]")
        I(f"s_lshl_b32 s{sA}, s2, 5")
        I(f"s_lshl_b32 s{sB}, s{sKW}, 15")
        I(f"s_add_u32 s{sA}, s{sA}, s{sB}")
        I(f"s_add_u32 s{sX0}, s{pW2}, s{sA}")
        I(f"s_addc_u32 s{sX0+1}, s{pW2+1}, 0")
        self.reset_tmpbase()
        for z in range(6):
            if z == 5:
                I(f"s_cmp_ge_u32 s{sKW}, 3")
                I("s_cbranch_scc1 L_w_done", when=lambda ctx, c: ctx["w"] >= 3)
            if z == 3:
                I("s_waitcnt vmcnt(35)")
            for i in range(8):
                self.vmem("global_load_ushort", f"v{T_W2+8*z+i}", vWOFF, sX0, (256 * z + i) * 1024)
        a.label("L_w_done")
        self.reset_tmpbase()
        I("s_waitcnt vmcnt(0)")
        for z in range(2):
            for j in range(4):
                I(f"v_lshl_or_b32 v{WOF+4*z+j}, v{T_WO+8*z+2*j+1}, 16, v{T_WO+8*z+2*j}")
        I(f"s_cmp_ge_u32 s2, {N_F1}")
        I("s_cbranch_scc1 L_pack_done", when=lambda ctx, c: ctx["id"] >= N_F1)
        for z in range(2):
            for j in range(4):
                I(f"v_lshl_or_b32 v{W1F+4*z+j}, v{T_W1+8*z+2*j+1}, 16, v{T_W1+8*z+2*j}")
        I(f"v_lshlrev_b32 v{XT}, 16, v{XT}")
        I(f"v_lshlrev_b32 v{B1F}, 16, v{B1F}")
        I(f"s_cmp_ge_u32 s2, {N_F2}")
        I("s_cbranch_scc1 L_pack_done", when=lambda ctx, c: ctx["id"] >= N_F2)
        I(f"v_lshlrev_b32 v{B2F}, 16, v{B2F}")
        for z in range(6):
            if z == 5:
                I(f"s_cmp_ge_u32 s{sKW}, 3")
                I("s_cbranch_scc1 L_pack_done", when=lambda ctx, c: ctx["w"] >= 3)
            for j in range(4):
                I(f"v_lshl_or_b32 v{W2F+4*z+j}, v{T_W2+8*z+2*j+1}, 16, v{T_W2+8*z+2*j}")
        a.label("L_pack_done")
        I(f"v_lshrrev_b32 v{vQ}, 4, v{vLANE}")
        I(f"v_and_b32 v{vN}, 15, v{vLANE}")
        self.barrier("B6")

        I(f"s_cmp_lt_u32 s{sW}, 2")
        I("s_cbranch_scc0 L_o_skip", when=lambda ctx, c: ctx["w"] >= 2)
        I("v_lshlrev_b32 v32, 2, v0")
        for k in range(8):
            I(f"ds_read_b32 v{33+k}, v32 offset:{OPART + 512*k}")
        I("s_waitcnt lgkmcnt(0)")
        self.tree_sum(range(33, 41), 33)
        I(f"global_store_dword v32, v33, s[{sMB}:{sMB+1}] offset:{MB_O} sc1")
        a.label("L_o_skip")
        if self.stop_after == "A":
            I("s_branch L_end")

        I(f"s_lshr_b32 s{sA}, s{sKW}, 1")
        I(f"s_lshl_b32 s{sA}, s{sA}, 13")
        I(f"s_lshl_b32 s{sB}, s{sG}, 10")
        I(f"s_add_u32 s{sA}, s{sA}, s{sB}")
        for s_ in range(8):
            I(f"s_add_u32 s{sB}, s{sA}, {32768*s_}")
            I(f"s_add_u32 s{sPB+2*s_}, s{pWS}, s{sB}")
            I(f"s_addc_u32 s{sPB+2*s_+1}, s{pWS+1}, 0")
        I("v_and_b32 v32, 127, v0")
        I("v_lshlrev_b32 v32, 2, v32")
        vAB, vAF, vRED = 104, 105, 106
        I(f"v_lshlrev_b32 v{vAB}, 1, v0")
        I(f"s_lshl_b32 s{sA}, s{sKW}, 7")
        I(f"v_lshl_add_u32 v{vAF}, v{vQ}, 4, s{sA}")
        I(f"s_lshl_b32 s{sA}, s{sKW}, 6")
        I(f"v_lshl_add_u32 v{vRED}, v{vN}, 2, s{sA}")

        def loads_B():
            for s_ in range(8):
                I(f"global_load_dword v{40+s_}, v32, s[{sPB+2*s_}:{sPB+2*s_+1}] offset:{MB_O} sc1")
        self.poll("L_pollB", loads_B, list(range(40, 48)), 48)
        self.tree_sum(range(40, 48), 40)
        I("v_cvt_pk_bf16_f32 v40, v40, v40")
        I(f"ds_write_b16 v{vAB}, v40 offset:{ABUF}")
        I("s_waitcnt lgkmcnt(0)")
        I(f"ds_read_b128 v[48:51], v{vAF} offset:{ABUF}")
        I(f"ds_read_b128 v[52:55], v{vAF} offset:{ABUF+64}")
        I("s_waitcnt lgkmcnt(0)")
        I(f"v_mfma_f32_16x16x32_bf16 v[56:59], v[48:51], v[{WOF}:{WOF+3}], 0")
        I(f"v_mfma_f32_16x16x32_bf16 v[56:59], v[52:55], v[{WOF+4}:{WOF+7}], v[56:59]")
        I("s_mov_b64 exec, 0xffff")
        I(f"ds_write_b32 v{vRED}, v56 offset:{RED}")
        I("s_mov_b64 exec, -1")
        I("s_waitcnt lgkmcnt(0)")
        self.barrier("B7")
        vN4 = 107
        I(f"v_lshlrev_b32 v{vN4}, 2, v{vN}")
        I(f"s_cmp_eq_u32 s{sW}, 0")
        I("s_cbranch_scc0 L_B_done", when=lambda ctx, c: ctx["w"] != 0)
        for k in range(8):
            I(f"ds_read_b32 v{60+k}, v{vN4} offset:{RED + 64*k}")
        I("s_waitcnt lgkmcnt(0)")
        self.tree_sum(range(60, 68), 60)
        I("s_mov_b64 exec, 0xffff")
        I(f"global_store_dword v{vN4}, v60, s[{sMB}:{sMB+1}] offset:{MB_ATT} sc1")
        I("s_mov_b64 exec, -1")
        a.label("L_B_done")
        I(f"s_cmp_ge_u32 s2, {N_F1}")
        I("s_cbranch_scc1 L_end", when=lambda ctx, c: ctx["id"] >= N_F1)
        if self.stop_after == "B":
            I("s_branch L_end")

        I("v_lshrrev_b32 v32, 4, v0")
        I("v_lshlrev_b32 v32, 13, v32")
        I(f"v_add_u32 v32, v32, v{vN4}")
        I(f"s_add_u32 s{sX0}, s{pWS}, {MB_ATT}")
        I(f"s_addc_u32 s{sX0+1}, s{pWS+1}, 0")
        I(f"s_add_u32 s{sX1}, s{pWS}, {MB_ATT + 4096}")
        I(f"s_addc_u32 s{sX1+1}, s{pWS+1}, 0")

        def loads_C():
            for gg in range(8):
                sb = sX0 if gg < 4 else sX1
                o = (gg & 3) * 1024
                I(f"global_load_dword v{40+gg}, v32, s[{sb}:{sb+1}]" + (f" offset:{o}" if o else "") + " sc1")
        self.poll("L_pollC", loads_C, list(range(40, 48)), 48)
        self.tree_sum(range(40, 48), 40)
        self.RB(40)
        I(f"v_add_f32 v{HT}, v{XT}, v40")
        self.RB(HT)
        I("v_lshlrev_b32 v33, 2, v0")
        I(f"ds_write_b32 v33, v{HT} offset:{HBUF}")
        I("s_waitcnt lgkmcnt(0)")
        self.barrier("B8")
        I(f"v_lshlrev_b32 v33, 5, v{vLANE}")
        I(f"ds_read_b128 v[40:43], v33 offset:{HBUF}")
        I(f"ds_read_b128 v[44:47], v33 offset:{HBUF+16}")
        I("s_waitcnt lgkmcnt(0)")
        S, MEAN, VV, SD, RC = 48, 49, 50, 51, 52
        self.ln_scalars(40, S, MEAN, VV, SD, RC)
        I(f"v_mov_b32 v53, v{HT}")
        self.ln_apply(53, 54, 55, MEAN, SD, RC)
        I("v_cvt_pk_bf16_f32 v53, v53, v53")
        I(f"ds_write_b16 v{vAB}, v53 offset:{ABUF}")
        I("s_waitcnt lgkmcnt(0)")
        I(f"ds_read_b128 v[48:51], v{vAF} offset:{ABUF}")
        I(f"ds_read_b128 v[52:55], v{vAF} offset:{ABUF+64}")
        I("s_waitcnt lgkmcnt(0)")
        I(f"v_mfma_f32_16x16x32_bf16 v[56:59], v[48:51], v[{W1F}:{W1F+3}], 0")
        I(f"v_mfma_f32_16x16x32_bf16 v[56:59], v[52:55], v[{W1F+4}:{W1F+7}], v[56:59]")
        I("s_mov_b64 exec, 0xffff")
        I(f"ds_write_b32 v{vRED}, v56 offset:{RED}")
        I("s_mov_b64 exec, -1")
        I("s_waitcnt lgkmcnt(0)")
        self.barrier("B9")
        I(f"s_cmp_eq_u32 s{sW}, 0")
        I("s_cbranch_scc0 L_C_done", when=lambda ctx, c: ctx["w"] != 0)
        for k in range(8):
            I(f"ds_read_b32 v{60+k}, v{vN4} offset:{RED + 64*k}")
        I("s_waitcnt lgkmcnt(0)")
        self.tree_sum(range(60, 68), 60)
        self.RB(60)
        I(f"v_add_f32 v60, v60, v{B1F}")
        self.RB(60)
        I("v_max_f32 v60, 0, v60")
        I("v_mul_f32 v60, v60, v60")
        I("v_mov_b32_dpp v61, v60 quad_perm:[1,0,3,2] row_mask:0xf bank_mask:0xf")
        I("v_cvt_pk_bf16_f32 v60, v60, v61")
        I(f"v_lshlrev_b32 v61, 1, v{vN}")
        I("s_mov_b64 exec, 0x5555")
        I(f"global_store_dword v61, v60, s[{sMB}:{sMB+1}] offset:{MB_G} sc1")
        I("s_mov_b64 exec, -1")
        a.label("L_C_done")
        I(f"s_cmp_ge_u32 s2, {N_F2}")
        I("s_cbranch_scc1 L_end", when=lambda ctx, c: ctx["id"] >= N_F2)
        if self.stop_after == "C":
            I("s_branch L_end")

        I(f"v_lshrrev_b32 v32, 1, v{vQ}")
        I("v_lshlrev_b32 v32, 10, v32")
        I(f"v_and_b32 v33, 1, v{vQ}")
        I("v_lshl_add_u32 v32, v33, 4, v32")
        I(f"s_lshl_b32 s{sA}, s{sKW}, 11")
        I(f"s_add_u32 s{sA}, s{sA}, {MB_G}")
        for z in range(6):
            I(f"s_add_u32 s{sB}, s{sA}, {16384*z}")
            I(f"s_add_u32 s{sPB+2*z}, s{pWS}, s{sB}")
            I(f"s_addc_u32 s{sPB+2*z+1}, s{pWS+1}, 0")

        def stageD(nz):
            def loads_D():
                for z in range(nz):
                    I(f"global_load_dwordx4 v[{40+4*z}:{43+4*z}], v32, s[{sPB+2*z}:{sPB+2*z+1}] sc1")
            self.poll(f"L_pollD{nz}", loads_D, list(range(40, 40 + 4 * nz)), 64)
            for z in range(nz):
                c = "0" if z == 0 else "v[66:69]"
                I(f"v_mfma_f32_16x16x32_bf16 v[66:69], v[{40+4*z}:{43+4*z}], v[{W2F+4*z}:{W2F+4*z+3}], {c}")
        I(f"s_cmp_lt_u32 s{sKW}, 3")
        I("s_cbranch_scc1 L_D6", when=lambda ctx, c: ctx["w"] < 3)
        stageD(5)
        I("s_branch L_Djoin")
        a.label("L_D6")
        stageD(6)
        a.label("L_Djoin")
        I("s_mov_b64 exec, 0xffff")
        I(f"ds_write_b32 v{vRED}, v66 offset:{RED}")
        I("s_mov_b64 exec, -1")
        I("s_waitcnt lgkmcnt(0)")
        self.barrier("B10")
        I(f"s_cmp_eq_u32 s{sW}, 0")
        I("s_cbranch_scc0 L_end", when=lambda ctx, c: ctx["w"] != 0)
        for k in range(8):
            I(f"ds_read_b32 v{60+k}, v{vN4} offset:{RED + 64*k}")
        I(f"s_lshl_b32 s{sA}, s2, 6")
        I(f"v_add_u32 v70, s{sA}, v{vN4}")
        I(f"ds_read_b32 v71, v70 offset:{HBUF}")
        I("s_waitcnt lgkmcnt(0)")
        self.tree_sum(range(60, 68), 60)
        self.RB(60)
        I(f"v_add_f32 v60, v60, v{B2F}")
        self.RB(60)
        I("v_add_f32 v60, v71, v60")
        I("v_cvt_pk_bf16_f32 v60, v60, v60")
        I("v_lshrrev_b32 v70, 1, v70")
        I("s_mov_b64 exec, 0xffff")
        I(f"global_store_short v70, v60, s[{pOUT}:{pOUT+1}]")
        I("s_mov_b64 exec, -1")
        I("s_branch L_end")

        a.label("L_vpath")
        self.barrier("B3")
        self.barrier("B4")
        self.barrier("B5")
        P = 8
        I(f"s_lshl_b32 s{sA}, s{sKW}, 7")
        I(f"v_lshl_add_u32 v22, v{vR}, 5, s{sA}")
        I(f"ds_read_b128 v[{P}:{P+3}], v22 offset:{PLDS}")
        I(f"ds_read_b128 v[{P+4}:{P+7}], v22 offset:{PLDS+16}")
        I("s_waitcnt lgkmcnt(0)")
        ACC = 32
        for j in range(8):
            I(f"s_waitcnt vmcnt({14 - 2*j})")
            self.pair_dot(ACC, KV + 8 * j, KV + 8 * j + 4, P + j, j == 0, 16, 17)
        self.r_reduce(ACC, 20)
        I(f"v_lshlrev_b32 v22, 1, v{vC16}")
        I(f"v_lshl_add_u32 v22, v{vR}, 3, v22")
        I(f"s_lshl_b32 s{sA}, s{sKW}, 9")
        I(f"v_add_u32 v22, s{sA}, v22")
        I(f"ds_write_b64 v22, v[20:21] offset:{OPART}")
        I("s_waitcnt lgkmcnt(0)")
        self.barrier("B6")
        a.label("L_end")
        I("s_endpgm")
        return a


def contexts():
    ctxs = []
    for wid in (0, 5, 40, 85, 86, 200, 255, 256, 260):
        for w in (0, 1, 2, 3, 7, 8, 15):
            ctxs.append(dict(name=f"id{wid}_w{w}", id=wid, w=w))
    return ctxs


def emit(path, **kw):
    g = G(**kw)
    a = g.build()
    rounds = a.resolve_hazards()
    res, errs = a.verify(contexts())
    for e in errs[:40]:
        print("VERIFY ERROR:", e)
    bars = {}
    for n, b in res.items():
        wid = n.split("_")[0]
        bars.setdefault(wid, set()).add(b)
    print("barrier counts per wg id:", {k: sorted(v) for k, v in bars.items()})
    print("instructions:", a.count(), "hazard rounds:", rounds)
    text = f"""; Fused decode layer: preLN + sliding-window cached attention + wo + preLN + squared-ReLU FFN
; @launch grid=(256,1,1) block=(1024,1,1) lds={LDS_BYTES}
.amdgcn_target "amdgcn-amd-amdhsa--gfx950"
.text
.globl {KERNEL}
.p2align 8
.type {KERNEL},@function
{KERNEL}:
{a.text()}
.section .rodata,"a"
.p2align 6
.amdhsa_kernel {KERNEL}
  .amdhsa_next_free_vgpr 128
  .amdhsa_next_free_sgpr 96
  .amdhsa_accum_offset 128
  .amdhsa_group_segment_fixed_size 0
  .amdhsa_kernarg_size 104
  .amdhsa_user_sgpr_count 2
  .amdhsa_user_sgpr_kernarg_segment_ptr 1
  .amdhsa_system_sgpr_workgroup_id_x 1
  .amdhsa_float_denorm_mode_32 3
  .amdhsa_float_denorm_mode_16_64 3
.end_amdhsa_kernel
"""
    open(path, "w").write(text)
    return errs


if __name__ == "__main__":
    ap = argparse.ArgumentParser()
    ap.add_argument("--out", default=f"cdna_kernels/{NAME}.s")
    ap.add_argument("--stop", default=None)
    ap.add_argument("--dbg", action="store_true")
    ap.add_argument("--no-nt", action="store_true")
    args = ap.parse_args()
    errs = emit(args.out, stop_after=args.stop, dbg=args.dbg, kv_nt=not args.no_nt)
    sys.exit(1 if errs else 0)
```

```python
import argparse
import sys

sys.path.insert(0, "dev")
from asmlib import Asm

NAME = "sequential_preLN__sliding_block_cached__dense_activation_squared_relu__decode"
KERNEL = NAME + "_kernel"

QPART, QBF, WSTAT, GSTAT, PLDS, OPART, RED, HBUF, ABUF = 0, 8192, 8448, 8512, 8576, 9600, 13696, 14208, 16256
LDS_BYTES = 17408

MB_O, MB_STAT, MB_ATT, MB_G = 0, 512, 640, 768

SPIN = 30000
N_F1 = 86
N_F2 = 32

sW, sG, sC, sHL, sS, sH, sKW = 3, 4, 5, 6, 7, 8, 9
sMB = 10
sTMP = 12
sSELLO, sSELHI = 14, 15
pX, pKC, pVC, pWQ, pWO, pBX, pW1, pB1, pW2, pB2, pOUT, pDBG, pWS = 16, 18, 20, 22, 24, 26, 28, 30, 32, 34, 36, 38, 40
sKVB, sWQB = 42, 44
sM3, sM2, sM1, sM0 = 46, 48, 50, 52
sA, sB, sSPIN, sT = 54, 55, 56, 57
sPB = 58
sX0, sX1 = 74, 76

LOG2E = "0x3fb8aa3b"
SCALE = "0x3db504f3"


class G:
    def __init__(self, stop_after=None, dbg=False, kv_nt=True, stamps=False, wq_mods=""):
        self.a = Asm()
        self.wq_mods = wq_mods
        self.stamps = stamps
        self.stop_after = stop_after
        self.dbg = dbg
        self.kv_nt = kv_nt
        self._tmpbase = None

    def I(self, t, when=None):
        self.a.I(t, when)

    def RB(self, v):
        self.I(f"v_cvt_pk_bf16_f32 v{v}, v{v}, v{v}")
        self.I(f"v_lshlrev_b32 v{v}, 16, v{v}")

    def wave_reduce(self, op, v, sdst):
        for n in (8, 4, 2, 1):
            self.I(f"v_{op}_f32_dpp v{v}, v{v}, v{v} row_ror:{n} row_mask:0xf bank_mask:0xf")
        self.I(f"v_{op}_f32_dpp v{v}, v{v}, v{v} row_bcast:15 row_mask:0xa bank_mask:0xf")
        self.I(f"v_{op}_f32_dpp v{v}, v{v}, v{v} row_bcast:31 row_mask:0xc bank_mask:0xf")
        self.I(f"v_readlane_b32 s{sdst}, v{v}, 63")

    def reset_tmpbase(self):
        self._tmpbase = None

    def vmem(self, op, data, voff, sbase, off, mods="", store=False):
        sb = sbase
        if not (-4096 <= off <= 4095):
            lo = off % 4096
            hi = off - lo
            if self._tmpbase != (sbase, hi):
                self.I(f"s_add_u32 s{sTMP}, s{sbase}, {hi}")
                self.I(f"s_addc_u32 s{sTMP+1}, s{sbase+1}, 0")
                self._tmpbase = (sbase, hi)
            sb, off = sTMP, lo
        o = f" offset:{off}" if off else ""
        m = (" " + mods) if mods else ""
        if store:
            self.I(f"{op} v{voff}, {data}, s[{sb}:{sb+1}]{o}{m}")
        else:
            self.I(f"{op} {data}, v{voff}, s[{sb}:{sb+1}]{o}{m}")

    def tree_sum(self, regs, dst):
        regs = list(regs)
        while len(regs) > 1:
            nxt = []
            for k in range(0, len(regs) - 1, 2):
                self.I(f"v_add_f32 v{regs[k]}, v{regs[k]}, v{regs[k+1]}")
                nxt.append(regs[k])
            if len(regs) % 2:
                nxt.append(regs[-1])
            regs = nxt
        if regs[0] != dst:
            self.I(f"v_mov_b32 v{dst}, v{regs[0]}")

    def poll(self, stem, emit_loads, check_regs, tmp):
        La, Ld = self.a.newlabel(stem), self.a.newlabel(stem + "_ok")
        self.I(f"s_mov_b32 s{sSPIN}, {SPIN}")
        self.a.label(La)
        self.reset_tmpbase()
        emit_loads()
        self.I("s_waitcnt vmcnt(0)")
        regs = list(check_regs)
        first = True
        k = 0
        while k < len(regs):
            if first:
                if len(regs) - k >= 3:
                    self.I(f"v_max3_u32 v{tmp}, v{regs[k]}, v{regs[k+1]}, v{regs[k+2]}")
                    k += 3
                elif len(regs) - k == 2:
                    self.I(f"v_max_u32 v{tmp}, v{regs[k]}, v{regs[k+1]}")
                    k += 2
                else:
                    self.I(f"v_mov_b32 v{tmp}, v{regs[k]}")
                    k += 1
                first = False
            else:
                if len(regs) - k >= 2:
                    self.I(f"v_max3_u32 v{tmp}, v{tmp}, v{regs[k]}, v{regs[k+1]}")
                    k += 2
                else:
                    self.I(f"v_max_u32 v{tmp}, v{tmp}, v{regs[k]}")
                    k += 1
        self.I(f"v_cmp_eq_u32 vcc, -1, v{tmp}")
        self.I(f"s_cbranch_vccz {Ld}", when=lambda ctx, cnt: cnt >= 1)
        self.I(f"s_sub_u32 s{sSPIN}, s{sSPIN}, 1")
        self.I(f"s_cmp_lg_u32 s{sSPIN}, 0")
        self.I(f"s_cbranch_scc1 {La}", when=lambda ctx, cnt: True)
        self.a.label(Ld)
        self.reset_tmpbase()

    def stamp(self, k):
        if self.stamps:
            self.I("s_memrealtime s[100:101]")
            self.I("s_waitcnt lgkmcnt(0)")
            self.I(f"s_mov_b32 s{78+k}, s100")

    def barrier(self, tag):
        self.I(f"s_barrier ; {tag}")

    def pair_dot(self, acc, A, B, P, first, L, H):
        for t in range(4):
            self.I(f"v_perm_b32 v{L}, v{B+t}, v{A+t}, s{sSELLO}")
            self.I(f"v_perm_b32 v{H}, v{B+t}, v{A+t}, s{sSELHI}")
            c0 = "0" if first else f"v{acc+2*t}"
            c1 = "0" if first else f"v{acc+2*t+1}"
            self.I(f"v_dot2_f32_bf16 v{acc+2*t}, v{L}, v{P}, {c0}")
            self.I(f"v_dot2_f32_bf16 v{acc+2*t+1}, v{H}, v{P}, {c1}")
            L, H = L ^ 2, H ^ 2

    def r_reduce(self, acc, U):
        for j in range(4):
            self.I(f"v_permlane32_swap_b32 v{acc+j}, v{acc+j+4}")
        for j in range(4):
            self.I(f"v_add_f32 v{acc+j}, v{acc+j}, v{acc+j+4}")
        for j in range(2):
            self.I(f"v_permlane16_swap_b32 v{acc+j}, v{acc+j+2}")
        self.I(f"v_add_f32 v{U}, v{acc}, v{acc+2}")
        self.I(f"v_add_f32 v{U+1}, v{acc+1}, v{acc+3}")

    def merge8(self, M, L, T, D):
        self.I(f"v_mov_b32 v{T}, v{M}")
        for pat in ("quad_perm:[1,0,3,2]", "quad_perm:[2,3,0,1]", "row_half_mirror"):
            self.I(f"v_max_f32_dpp v{T}, v{T}, v{T} {pat} row_mask:0xf bank_mask:0xf")
        self.I(f"v_sub_f32 v{D}, v{M}, v{T}")
        self.I(f"v_mul_f32 v{D}, {LOG2E}, v{D}")
        self.I(f"v_exp_f32 v{D}, v{D}")
        self.I(f"v_mul_f32 v{L}, v{L}, v{D}")
        for pat in ("quad_perm:[1,0,3,2]", "quad_perm:[2,3,0,1]", "row_half_mirror"):
            self.I(f"v_add_f32_dpp v{L}, v{L}, v{L} {pat} row_mask:0xf bank_mask:0xf")
        self.I(f"v_mov_b32 v{M}, v{T}")

    def ln_scalars(self, T8, S, MEAN, VV, SD, RC):
        self.I(f"v_add_f32 v{S}, v{T8}, v{T8+1}")
        self.I(f"v_add_f32 v{VV}, v{T8+2}, v{T8+3}")
        self.I(f"v_add_f32 v{MEAN}, v{T8+4}, v{T8+5}")
        self.I(f"v_add_f32 v{SD}, v{T8+6}, v{T8+7}")
        self.I(f"v_add_f32 v{S}, v{S}, v{VV}")
        self.I(f"v_add_f32 v{MEAN}, v{MEAN}, v{SD}")
        self.I(f"v_add_f32 v{S}, v{S}, v{MEAN}")
        self.wave_reduce("add", S, sA)
        self.I(f"v_mov_b32 v{MEAN}, s{sA}")
        self.I(f"v_mul_f32 v{MEAN}, 0x3b000000, v{MEAN}")
        for k in range(8):
            self.I(f"v_sub_f32 v{T8+k}, v{T8+k}, v{MEAN}")
        self.I(f"v_mul_f32 v{S}, v{T8}, v{T8}")
        for k in range(1, 8):
            self.I(f"v_fma_f32 v{S}, v{T8+k}, v{T8+k}, v{S}")
        self.wave_reduce("add", S, sA)
        self.I(f"v_mov_b32 v{VV}, s{sA}")
        self.I(f"v_mul_f32 v{VV}, 0x3b000000, v{VV}")
        self.RB(VV)
        self.I(f"v_add_f32 v{VV}, 0x3727c5ac, v{VV}")
        self.RB(VV)
        self.I(f"v_sqrt_f32 v{SD}, v{VV}")
        self.RB(SD)
        self.I(f"v_rcp_f32 v{RC}, v{SD}")
        self.RB(MEAN)

    def ln_apply(self, X, Y, E, MEAN, SD, RC):
        self.I(f"v_sub_f32 v{X}, v{X}, v{MEAN}")
        self.RB(X)
        self.I(f"v_mul_f32 v{Y}, v{X}, v{RC}")
        self.I(f"v_fma_f32 v{E}, -v{Y}, v{SD}, v{X}")
        self.I(f"v_fma_f32 v{X}, v{E}, v{RC}, v{Y}")

    def dbg_store(self, op, voff, data, off):
        if self.dbg:
            self.vmem(op, data, voff, pWS, (1 << 20) + off, store=True)
            self.reset_tmpbase()

    def build(self):
        I, a = self.I, self.a
        vLANE, vR, vC16 = 1, 2, 3
        XA, XF, WQ, KV = 24, 28, 32, 64
        isK = lambda ctx: ctx["w"] < 8

        I("s_cmp_ge_u32 s2, 256")
        I("s_cbranch_scc1 L_end2", when=lambda ctx, c: ctx["id"] >= 256)
        I(f"s_load_dwordx16 s[16:31], s[0:1], 0")
        I(f"s_load_dwordx8 s[32:39], s[0:1], 64")
        I(f"s_load_dwordx2 s[40:41], s[0:1], 96")
        I(f"v_and_b32 v{vLANE}, 63, v0")
        I(f"v_lshrrev_b32 v4, 6, v0")
        I(f"v_lshrrev_b32 v{vR}, 4, v{vLANE}")
        I(f"v_and_b32 v{vC16}, 15, v{vLANE}")
        I(f"v_lshlrev_b32 v{vC16}, 4, v{vC16}")
        I(f"v_readfirstlane_b32 s{sW}, v4")
        I(f"s_and_b32 s{sG}, s2, 7")
        I(f"s_lshr_b32 s{sC}, s2, 3")
        I(f"s_and_b32 s{sHL}, s{sC}, 3")
        I(f"s_lshr_b32 s{sS}, s{sC}, 2")
        I(f"s_lshl_b32 s{sH}, s{sG}, 2")
        I(f"s_add_u32 s{sH}, s{sH}, s{sHL}")
        I(f"s_and_b32 s{sKW}, s{sW}, 7")
        I(f"s_mov_b32 s{sSELLO}, 0x05040100")
        I(f"s_mov_b32 s{sSELHI}, 0x07060302")
        vKVOFF, vWQOFF, vXAOFF, vXFOFF = 4, 5, 6, 7
        I(f"v_lshl_add_u32 v{vKVOFF}, v{vR}, 12, v{vC16}")
        I(f"v_lshl_add_u32 v{vWQOFF}, v{vR}, 16, v{vC16}")
        I(f"v_lshlrev_b32 v{vXAOFF}, 4, v{vLANE}")
        I(f"v_and_b32 v{vXFOFF}, 0xfffffff0, v0")
        I(f"s_lshl_b32 s{sA}, s{sH}, 23")
        I(f"s_add_u32 s{sA}, s{sA}, 0x700000")
        I(f"s_lshl_b32 s{sB}, s{sS}, 17")
        I(f"s_add_u32 s{sA}, s{sA}, s{sB}")
        I(f"s_lshl_b32 s{sB}, s{sKW}, 14")
        I(f"s_add_u32 s{sA}, s{sA}, s{sB}")
        I(f"s_lshl_b32 s{sB}, s{sH}, 8")
        I(f"s_lshl_b32 s{sT}, s{sW}, 18")
        I(f"s_add_u32 s{sB}, s{sB}, s{sT}")
        I("s_waitcnt lgkmcnt(0)")
        if self.stamps:
            for k in range(20):
                I(f"s_mov_b32 s{78+k}, 0")
        self.stamp(0)
        I(f"s_cmp_lt_u32 s{sW}, 8")
        I(f"s_cselect_b32 s{sKVB}, s{pKC}, s{pVC}")
        I(f"s_cselect_b32 s{sKVB+1}, s{pKC+1}, s{pVC+1}")
        I(f"s_add_u32 s{sKVB}, s{sKVB}, s{sA}")
        I(f"s_addc_u32 s{sKVB+1}, s{sKVB+1}, 0")
        I(f"s_add_u32 s{sWQB}, s{pWQ}, s{sB}")
        I(f"s_addc_u32 s{sWQB+1}, s{pWQ+1}, 0")
        I(f"s_lshl_b32 s{sA}, s2, 10")
        I(f"s_add_u32 s{sMB}, s{pWS}, s{sA}")
        I(f"s_addc_u32 s{sMB+1}, s{pWS+1}, 0")

        I(f"s_cmp_eq_u32 s{sW}, 0")
        I("s_cbranch_scc0 L_noclear", when=lambda ctx, c: ctx["w"] != 0)
        for k in range(4):
            I(f"v_mov_b32 v{8+k}, -1")
        I(f"global_store_dwordx4 v{vXAOFF}, v[8:11], s[{sMB}:{sMB+1}] sc1")
        a.label("L_noclear")

        I(f"global_load_dwordx4 v[{XA}:{XA+3}], v{vXAOFF}, s[{pX}:{pX+1}]")
        I(f"global_load_dwordx4 v[{XF}:{XF+3}], v{vXFOFF}, s[{pX}:{pX+1}]")
        self.reset_tmpbase()
        for i in range(8):
            if self.wq_mods == "skip":
                I(f"global_load_dwordx4 v[{WQ+4*i}:{WQ+4*i+3}], v{vXAOFF}, s[{pX}:{pX+1}]")
            else:
                self.vmem("global_load_dwordx4", f"v[{WQ+4*i}:{WQ+4*i+3}]", vWQOFF, sWQB, i * 8192, self.wq_mods)
        nt = "nt" if self.kv_nt else ""

        def kv_loads():
            for i in range(16):
                self.vmem("global_load_dwordx4", f"v[{KV+4*i}:{KV+4*i+3}]", vKVOFF, sKVB, i * 256, nt)

        I(f"s_cmp_lt_u32 s{sW}, 8")
        I("s_cbranch_scc0 L_v_pre", when=lambda ctx, c: not isK(ctx))
        kv_loads()
        self.barrier("B0")
        I("s_branch L_loads_done")
        a.label("L_v_pre")
        self.barrier("B0")
        kv_loads()
        a.label("L_loads_done")
        self.stamp(1)

        T8, S, MEAN, VV, SD, RC = 8, 16, 17, 18, 19, 20
        I("s_waitcnt vmcnt(24)")
        self.stamp(2)
        for t in range(4):
            I(f"v_lshlrev_b32 v{T8+2*t}, 16, v{XA+t}")
            I(f"v_and_b32 v{T8+2*t+1}, 0xffff0000, v{XA+t}")
        self.ln_scalars(T8, S, MEAN, VV, SD, RC)
        XP = 4
        for t in range(4):
            I(f"v_lshlrev_b32 v{T8+2*t}, 16, v{XF+t}")
            I(f"v_and_b32 v{T8+2*t+1}, 0xffff0000, v{XF+t}")
        for k in range(8):
            self.ln_apply(T8 + k, 21, 22, MEAN, SD, RC)
        for j in range(4):
            I(f"v_cvt_pk_bf16_f32 v{XP+j}, v{T8+2*j}, v{T8+2*j+1}")

        ACC = 8
        for jp in range(4):
            I(f"s_waitcnt vmcnt({16 + 6 - 2*jp})")
            self.pair_dot(ACC, WQ + 8 * jp, WQ + 8 * jp + 4, XP + jp, jp == 0, 16, 17)
        U = 20
        self.r_reduce(ACC, U)
        I(f"v_lshlrev_b32 v22, 1, v{vC16}")
        I(f"v_lshl_add_u32 v22, v{vR}, 3, v22")
        I(f"s_lshl_b32 s{sA}, s{sW}, 9")
        I(f"v_add_u32 v22, s{sA}, v22")
        I(f"ds_write_b64 v22, v[{U}:{U+1}] offset:{QPART}")
        I("s_waitcnt lgkmcnt(0)")
        self.stamp(3)
        self.barrier("B1")
        I(f"s_cmp_lt_u32 s{sW}, 2")
        I("s_cbranch_scc0 L_q_skip", when=lambda ctx, c: ctx["w"] >= 2)
        I("v_lshlrev_b32 v22, 2, v0")
        for k in range(16):
            I(f"ds_read_b32 v{32+k}, v22 offset:{QPART + 512*k}")
        I("s_waitcnt lgkmcnt(0)")
        self.tree_sum(range(32, 48), 8)
        I("v_cvt_pk_bf16_f32 v8, v8, v8")
        I("v_lshlrev_b32 v22, 1, v0")
        I(f"ds_write_b16 v22, v8 offset:{QBF}")
        if self.dbg:
            I("v_lshlrev_b32 v9, 16, v8")
            I("v_lshlrev_b32 v22, 2, v0")
            I(f"s_lshl_b32 s{sA}, s2, 9")
            I(f"v_add_u32 v22, s{sA}, v22")
            self.dbg_store("global_store_dword", 22, "v9", 0)
        I("s_waitcnt lgkmcnt(0)")
        a.label("L_q_skip")
        self.barrier("B2")
        self.stamp(4)
        I(f"s_cmp_lt_u32 s{sW}, 8")
        I("s_cbranch_scc0 L_vpath", when=lambda ctx, c: not isK(ctx))

        Q, SC0 = 4, 32
        I(f"ds_read_b128 v[{Q}:{Q+3}], v{vC16} offset:{QBF}")
        I("s_mov_b64 exec, 1")
        I("v_mov_b32 v8, s2")
        I("v_mov_b32 v9, 1")
        I("v_mov_b32 v10, 0")
        I(f"s_cmp_eq_u32 s{sW}, 0")
        I("s_cbranch_scc0 L_dummy", when=lambda ctx, c: ctx["w"] != 0)
        I(f"global_store_byte v8, v9, s[{pDBG}:{pDBG+1}] sc1")
        I("s_branch L_dummy_join")
        a.label("L_dummy")
        I(f"global_load_dword v25, v10, s[{pX}:{pX+1}]")
        a.label("L_dummy_join")
        I("s_mov_b64 exec, -1")
        for bit, sm in ((8, sM3), (4, sM2), (2, sM1), (1, sM0)):
            I(f"v_and_b32 v12, {bit}, v{vLANE}")
            I(f"v_cmp_ne_u32 s[{sm}:{sm+1}], 0, v12")
        I("s_waitcnt lgkmcnt(0)")
        for i in range(16):
            I(f"s_waitcnt vmcnt({15 - i + 1})")
            k0 = KV + 4 * i
            I(f"v_dot2_f32_bf16 v{SC0+i}, v{k0}, v{Q}, 0")
            for t in range(1, 4):
                I(f"v_dot2_f32_bf16 v{SC0+i}, v{k0+t}, v{Q+t}, v{SC0+i}")
        self.stamp(5)
        cur = [SC0 + i for i in range(16)]
        tmpk = 48
        for step, (sm, pat) in enumerate(((sM3, "row_mirror"), (sM2, "row_half_mirror"),
                                          (sM1, "quad_perm:[3,2,1,0]"), (sM0, "quad_perm:[1,0,3,2]"))):
            h = len(cur) // 2
            nxt = []
            for i in range(h):
                lo_, hi_ = cur[i], cur[i + h]
                I(f"v_cndmask_b32 v{tmpk+i}, v{hi_}, v{lo_}, s[{sm}:{sm+1}]")
            for i in range(h):
                lo_, hi_ = cur[i], cur[i + h]
                I(f"v_cndmask_b32 v{lo_}, v{lo_}, v{hi_}, s[{sm}:{sm+1}]")
            for i in range(h):
                lo_ = cur[i]
                I(f"v_add_f32_dpp v{lo_}, v{tmpk+i}, v{lo_} {pat} row_mask:0xf bank_mask:0xf")
                nxt.append(lo_)
            cur = nxt
        RAW = cur[0]
        SC, E = 8, 9
        I(f"v_mov_b32 v{SC}, v{RAW}")
        self.RB(SC)
        I(f"v_mul_f32 v{SC}, {SCALE}, v{SC}")
        self.RB(SC)
        if self.dbg:
            I("v_lshlrev_b32 v22, 2, v0")
            I(f"s_lshl_b32 s{sA}, s2, 11")
            I(f"v_add_u32 v22, s{sA}, v22")
            self.dbg_store("global_store_dword", 22, f"v{SC}", 1 << 17)
        I(f"v_mov_b32 v10, v{SC}")
        self.wave_reduce("max", 10, sA)
        I(f"v_subrev_f32 v{E}, s{sA}, v{SC}")
        I(f"v_mul_f32 v{E}, {LOG2E}, v{E}")
        I(f"v_exp_f32 v{E}, v{E}")
        I(f"v_mov_b32 v10, v{E}")
        self.wave_reduce("add", 10, sB)
        I(f"v_mov_b32 v10, s{sA}")
        I(f"v_mov_b32 v11, s{sB}")
        I(f"s_lshl_b32 s{sT}, s{sW}, 3")
        I(f"v_mov_b32 v12, s{sT}")
        I("s_mov_b64 exec, 1")
        I(f"ds_write_b64 v12, v[10:11] offset:{WSTAT}")
        I("s_mov_b64 exec, -1")
        I("s_waitcnt lgkmcnt(0)")
        self.barrier("B3")
        self.stamp(6)
        I(f"s_cmp_eq_u32 s{sW}, 0")
        I("s_cbranch_scc0 L_stat_skip", when=lambda ctx, c: ctx["w"] != 0)
        I(f"v_and_b32 v12, 7, v{vLANE}")
        I("v_lshlrev_b32 v13, 3, v12")
        I(f"ds_read_b64 v[10:11], v13 offset:{WSTAT}")
        I("s_waitcnt lgkmcnt(0)")
        self.merge8(10, 11, 14, 15)
        I("v_mov_b32 v13, 0")
        I("s_mov_b64 exec, 1")
        I(f"global_store_dwordx2 v13, v[10:11], s[{sMB}:{sMB+1}] offset:{MB_STAT} sc1")
        I("s_mov_b64 exec, -1")
        Lf, Lfd = "L_flag_poll", "L_flag_ok"
        I(f"v_lshlrev_b32 v13, 2, v{vLANE}")
        I(f"s_mov_b32 s{sSPIN}, {SPIN}")
        a.label(Lf)
        I(f"global_load_dword v14, v13, s[{pDBG}:{pDBG+1}] sc1")
        I("s_waitcnt vmcnt(0)")
        I("v_cmp_ne_u32 vcc, 0x01010101, v14")
        I(f"s_cbranch_vccz {Lfd}", when=lambda ctx, c: c >= 1)
        I(f"s_sub_u32 s{sSPIN}, s{sSPIN}, 1")
        I(f"s_cmp_lg_u32 s{sSPIN}, 0")
        I(f"s_cbranch_scc1 {Lf}", when=lambda ctx, c: True)
        a.label(Lfd)
        self.stamp(7)
        I(f"s_lshl_b32 s{sA}, s{sHL}, 13")
        I(f"s_lshl_b32 s{sB}, s{sG}, 10")
        I(f"s_add_u32 s{sA}, s{sA}, s{sB}")
        I(f"s_add_u32 s{sX0}, s{pWS}, s{sA}")
        I(f"s_addc_u32 s{sX0+1}, s{pWS+1}, 0")
        I("v_lshlrev_b32 v13, 15, v12")
        self.poll("L_stat_poll",
                  lambda: I(f"global_load_dwordx2 v[10:11], v13, s[{sX0}:{sX0+1}] offset:{MB_STAT} sc1"),
                  [10, 11], 14)
        self.stamp(8)
        self.merge8(10, 11, 14, 15)
        I("v_rcp_f32 v11, v11")
        I("v_mov_b32 v13, 0")
        I("s_mov_b64 exec, 1")
        I(f"ds_write_b64 v13, v[10:11] offset:{GSTAT}")
        I("s_mov_b64 exec, -1")
        I("s_waitcnt lgkmcnt(0)")
        a.label("L_stat_skip")
        self.barrier("B4")
        I("v_mov_b32 v13, 0")
        I(f"ds_read_b64 v[10:11], v13 offset:{GSTAT}")
        I("s_waitcnt lgkmcnt(0)")
        I(f"v_sub_f32 v{E}, v{SC}, v10")
        I(f"v_mul_f32 v{E}, {LOG2E}, v{E}")
        I(f"v_exp_f32 v{E}, v{E}")
        I(f"v_mul_f32 v{E}, v{E}, v11")
        I(f"v_cvt_pk_bf16_f32 v{E}, v{E}, v{E}")
        I("v_lshlrev_b32 v13, 1, v0")
        I(f"ds_write_b16 v13, v{E} offset:{PLDS}")
        I("s_waitcnt vmcnt(0) lgkmcnt(0)")
        self.barrier("B5")
        self.stamp(9)

        XT, B1F, B2F, HT = 4, 5, 6, 7
        W2F, WOF, W1F, TMPW = 8, 112, 120, 32
        vWOFF, vW1OFF = 2, 3
        vQ, vN = 110, 111
        tQ, tN = 98, 99
        I(f"v_lshrrev_b32 v{tQ}, 4, v{vLANE}")
        I(f"v_and_b32 v{tN}, 15, v{vLANE}")
        I(f"v_lshlrev_b32 v{vWOFF}, 13, v{tQ}")
        I(f"v_lshl_add_u32 v{vWOFF}, v{tN}, 1, v{vWOFF}")
        I(f"v_mul_u32_u24 v{vW1OFF}, {8*2752}, v{tQ}")
        I(f"v_lshl_add_u32 v{vW1OFF}, v{tN}, 1, v{vW1OFF}")
        I(f"s_lshl_b32 s{sA}, s{sG}, 19")
        I(f"s_lshl_b32 s{sB}, s{sKW}, 16")
        I(f"s_add_u32 s{sA}, s{sA}, s{sB}")
        I(f"s_lshl_b32 s{sB}, s{sC}, 5")
        I(f"s_add_u32 s{sA}, s{sA}, s{sB}")
        I(f"s_add_u32 s{sX0}, s{pWO}, s{sA}")
        I(f"s_addc_u32 s{sX0+1}, s{pWO+1}, 0")
        self.reset_tmpbase()
        T_WO, T_W1, T_W2 = TMPW, TMPW + 16, TMPW + 32
        for z in range(2):
            for i in range(8):
                self.vmem("global_load_ushort", f"v{T_WO+8*z+i}", vWOFF, sX0, (32 * z + i) * 1024)
        I(f"s_cmp_ge_u32 s2, {N_F1}")
        I("s_cbranch_scc1 L_w_done", when=lambda ctx, c: ctx["id"] >= N_F1)
        I("v_lshlrev_b32 v100, 1, v0")
        I(f"global_load_ushort v{XT}, v100, s[{pX}:{pX+1}]")
        I(f"s_lshl_b32 s{sA}, s2, 5")
        I(f"v_lshl_add_u32 v101, v{tN}, 1, s{sA}")
        I(f"global_load_ushort v{B1F}, v101, s[{pB1}:{pB1+1}]")
        I(f"s_mul_i32 s{sB}, s{sKW}, {64*2752}")
        I(f"s_add_u32 s{sA}, s{sA}, s{sB}")
        I(f"s_add_u32 s{sX0}, s{pW1}, s{sA}")
        I(f"s_addc_u32 s{sX0+1}, s{pW1+1}, 0")
        self.reset_tmpbase()
        for z in range(2):
            for i in range(8):
                self.vmem("global_load_ushort", f"v{T_W1+8*z+i}", vW1OFF, sX0, (32 * z + i) * 2752)
        I(f"s_cmp_ge_u32 s2, {N_F2}")
        I("s_cbranch_scc1 L_w_done", when=lambda ctx, c: ctx["id"] >= N_F2)
        I(f"global_load_ushort v{B2F}, v101, s[{pB2}:{pB2+1}]")
        I(f"s_lshl_b32 s{sA}, s2, 5")
        I(f"s_lshl_b32 s{sB}, s{sKW}, 15")
        I(f"s_add_u32 s{sA}, s{sA}, s{sB}")
        I(f"s_add_u32 s{sX0}, s{pW2}, s{sA}")
        I(f"s_addc_u32 s{sX0+1}, s{pW2+1}, 0")
        self.reset_tmpbase()
        for z in range(6):
            if z == 5:
                I(f"s_cmp_ge_u32 s{sKW}, 3")
                I("s_cbranch_scc1 L_w_done", when=lambda ctx, c: ctx["w"] >= 3)
            if z == 3:
                I("s_waitcnt vmcnt(35)")
            for i in range(8):
                self.vmem("global_load_ushort", f"v{T_W2+8*z+i}", vWOFF, sX0, (256 * z + i) * 1024)
        a.label("L_w_done")
        self.reset_tmpbase()
        I("s_waitcnt vmcnt(0)")
        for z in range(2):
            for j in range(4):
                I(f"v_lshl_or_b32 v{WOF+4*z+j}, v{T_WO+8*z+2*j+1}, 16, v{T_WO+8*z+2*j}")
        I(f"s_cmp_ge_u32 s2, {N_F1}")
        I("s_cbranch_scc1 L_pack_done", when=lambda ctx, c: ctx["id"] >= N_F1)
        for z in range(2):
            for j in range(4):
                I(f"v_lshl_or_b32 v{W1F+4*z+j}, v{T_W1+8*z+2*j+1}, 16, v{T_W1+8*z+2*j}")
        I(f"v_lshlrev_b32 v{XT}, 16, v{XT}")
        I(f"v_lshlrev_b32 v{B1F}, 16, v{B1F}")
        I(f"s_cmp_ge_u32 s2, {N_F2}")
        I("s_cbranch_scc1 L_pack_done", when=lambda ctx, c: ctx["id"] >= N_F2)
        I(f"v_lshlrev_b32 v{B2F}, 16, v{B2F}")
        for z in range(6):
            if z == 5:
                I(f"s_cmp_ge_u32 s{sKW}, 3")
                I("s_cbranch_scc1 L_pack_done", when=lambda ctx, c: ctx["w"] >= 3)
            for j in range(4):
                I(f"v_lshl_or_b32 v{W2F+4*z+j}, v{T_W2+8*z+2*j+1}, 16, v{T_W2+8*z+2*j}")
        a.label("L_pack_done")
        I(f"v_lshrrev_b32 v{vQ}, 4, v{vLANE}")
        I(f"v_and_b32 v{vN}, 15, v{vLANE}")
        self.stamp(10)
        self.barrier("B6")
        self.stamp(11)

        I(f"s_cmp_lt_u32 s{sW}, 2")
        I("s_cbranch_scc0 L_o_skip", when=lambda ctx, c: ctx["w"] >= 2)
        I("v_lshlrev_b32 v32, 2, v0")
        for k in range(8):
            I(f"ds_read_b32 v{33+k}, v32 offset:{OPART + 512*k}")
        I("s_waitcnt lgkmcnt(0)")
        self.tree_sum(range(33, 41), 33)
        I(f"global_store_dword v32, v33, s[{sMB}:{sMB+1}] offset:{MB_O} sc1")
        a.label("L_o_skip")
        if self.stop_after == "A":
            I("s_branch L_end")

        I(f"s_lshr_b32 s{sA}, s{sKW}, 1")
        I(f"s_lshl_b32 s{sA}, s{sA}, 13")
        I(f"s_lshl_b32 s{sB}, s{sG}, 10")
        I(f"s_add_u32 s{sA}, s{sA}, s{sB}")
        for s_ in range(8):
            I(f"s_add_u32 s{sB}, s{sA}, {32768*s_}")
            I(f"s_add_u32 s{sPB+2*s_}, s{pWS}, s{sB}")
            I(f"s_addc_u32 s{sPB+2*s_+1}, s{pWS+1}, 0")
        I("v_and_b32 v32, 127, v0")
        I("v_lshlrev_b32 v32, 2, v32")
        vAB, vAF, vRED = 104, 105, 106
        I(f"v_lshlrev_b32 v{vAB}, 1, v0")
        I(f"s_lshl_b32 s{sA}, s{sKW}, 7")
        I(f"v_lshl_add_u32 v{vAF}, v{vQ}, 4, s{sA}")
        I(f"s_lshl_b32 s{sA}, s{sKW}, 6")
        I(f"v_lshl_add_u32 v{vRED}, v{vN}, 2, s{sA}")

        def loads_B():
            for s_ in range(8):
                I(f"global_load_dword v{40+s_}, v32, s[{sPB+2*s_}:{sPB+2*s_+1}] offset:{MB_O} sc1")
        self.poll("L_pollB", loads_B, list(range(40, 48)), 48)
        self.stamp(12)
        self.tree_sum(range(40, 48), 40)
        I("v_cvt_pk_bf16_f32 v40, v40, v40")
        I(f"ds_write_b16 v{vAB}, v40 offset:{ABUF}")
        I("s_waitcnt lgkmcnt(0)")
        I(f"ds_read_b128 v[48:51], v{vAF} offset:{ABUF}")
        I(f"ds_read_b128 v[52:55], v{vAF} offset:{ABUF+64}")
        I("s_waitcnt lgkmcnt(0)")
        I(f"v_mfma_f32_16x16x32_bf16 v[56:59], v[48:51], v[{WOF}:{WOF+3}], 0")
        I(f"v_mfma_f32_16x16x32_bf16 v[56:59], v[52:55], v[{WOF+4}:{WOF+7}], v[56:59]")
        I("s_mov_b64 exec, 0xffff")
        I(f"ds_write_b32 v{vRED}, v56 offset:{RED}")
        I("s_mov_b64 exec, -1")
        I("s_waitcnt lgkmcnt(0)")
        self.barrier("B7")
        vN4 = 107
        I(f"v_lshlrev_b32 v{vN4}, 2, v{vN}")
        I(f"s_cmp_eq_u32 s{sW}, 0")
        I("s_cbranch_scc0 L_B_done", when=lambda ctx, c: ctx["w"] != 0)
        for k in range(8):
            I(f"ds_read_b32 v{60+k}, v{vN4} offset:{RED + 64*k}")
        I("s_waitcnt lgkmcnt(0)")
        self.tree_sum(range(60, 68), 60)
        I("s_mov_b64 exec, 0xffff")
        I(f"global_store_dword v{vN4}, v60, s[{sMB}:{sMB+1}] offset:{MB_ATT} sc1")
        I("s_mov_b64 exec, -1")
        a.label("L_B_done")
        self.stamp(13)
        I(f"s_cmp_ge_u32 s2, {N_F1}")
        I("s_cbranch_scc1 L_end", when=lambda ctx, c: ctx["id"] >= N_F1)
        if self.stop_after == "B":
            I("s_branch L_end")

        I("v_lshrrev_b32 v32, 4, v0")
        I("v_lshlrev_b32 v32, 13, v32")
        I(f"v_add_u32 v32, v32, v{vN4}")
        I(f"s_add_u32 s{sX0}, s{pWS}, {MB_ATT}")
        I(f"s_addc_u32 s{sX0+1}, s{pWS+1}, 0")
        I(f"s_add_u32 s{sX1}, s{pWS}, {MB_ATT + 4096}")
        I(f"s_addc_u32 s{sX1+1}, s{pWS+1}, 0")

        def loads_C():
            for gg in range(8):
                sb = sX0 if gg < 4 else sX1
                o = (gg & 3) * 1024
                I(f"global_load_dword v{40+gg}, v32, s[{sb}:{sb+1}]" + (f" offset:{o}" if o else "") + " sc1")
        self.poll("L_pollC", loads_C, list(range(40, 48)), 48)
        self.stamp(14)
        self.tree_sum(range(40, 48), 40)
        self.RB(40)
        I(f"v_add_f32 v{HT}, v{XT}, v40")
        self.RB(HT)
        I("v_lshlrev_b32 v33, 2, v0")
        I(f"ds_write_b32 v33, v{HT} offset:{HBUF}")
        I("s_waitcnt lgkmcnt(0)")
        self.barrier("B8")
        I(f"v_lshlrev_b32 v33, 5, v{vLANE}")
        I(f"ds_read_b128 v[40:43], v33 offset:{HBUF}")
        I(f"ds_read_b128 v[44:47], v33 offset:{HBUF+16}")
        I("s_waitcnt lgkmcnt(0)")
        S, MEAN, VV, SD, RC = 48, 49, 50, 51, 52
        self.ln_scalars(40, S, MEAN, VV, SD, RC)
        I(f"v_mov_b32 v53, v{HT}")
        self.ln_apply(53, 54, 55, MEAN, SD, RC)
        I("v_cvt_pk_bf16_f32 v53, v53, v53")
        I(f"ds_write_b16 v{vAB}, v53 offset:{ABUF}")
        I("s_waitcnt lgkmcnt(0)")
        I(f"ds_read_b128 v[48:51], v{vAF} offset:{ABUF}")
        I(f"ds_read_b128 v[52:55], v{vAF} offset:{ABUF+64}")
        I("s_waitcnt lgkmcnt(0)")
        I(f"v_mfma_f32_16x16x32_bf16 v[56:59], v[48:51], v[{W1F}:{W1F+3}], 0")
        I(f"v_mfma_f32_16x16x32_bf16 v[56:59], v[52:55], v[{W1F+4}:{W1F+7}], v[56:59]")
        I("s_mov_b64 exec, 0xffff")
        I(f"ds_write_b32 v{vRED}, v56 offset:{RED}")
        I("s_mov_b64 exec, -1")
        I("s_waitcnt lgkmcnt(0)")
        self.barrier("B9")
        I(f"s_cmp_eq_u32 s{sW}, 0")
        I("s_cbranch_scc0 L_C_done", when=lambda ctx, c: ctx["w"] != 0)
        for k in range(8):
            I(f"ds_read_b32 v{60+k}, v{vN4} offset:{RED + 64*k}")
        I("s_waitcnt lgkmcnt(0)")
        self.tree_sum(range(60, 68), 60)
        self.RB(60)
        I(f"v_add_f32 v60, v60, v{B1F}")
        self.RB(60)
        I("v_max_f32 v60, 0, v60")
        I("v_mul_f32 v60, v60, v60")
        I("v_mov_b32_dpp v61, v60 quad_perm:[1,0,3,2] row_mask:0xf bank_mask:0xf")
        I("v_cvt_pk_bf16_f32 v60, v60, v61")
        I(f"v_lshlrev_b32 v61, 1, v{vN}")
        I("s_mov_b64 exec, 0x5555")
        I(f"global_store_dword v61, v60, s[{sMB}:{sMB+1}] offset:{MB_G} sc1")
        I("s_mov_b64 exec, -1")
        a.label("L_C_done")
        self.stamp(15)
        I(f"s_cmp_ge_u32 s2, {N_F2}")
        I("s_cbranch_scc1 L_end", when=lambda ctx, c: ctx["id"] >= N_F2)
        if self.stop_after == "C":
            I("s_branch L_end")

        I(f"v_lshrrev_b32 v32, 1, v{vQ}")
        I("v_lshlrev_b32 v32, 10, v32")
        I(f"v_and_b32 v33, 1, v{vQ}")
        I("v_lshl_add_u32 v32, v33, 4, v32")
        I(f"s_lshl_b32 s{sA}, s{sKW}, 11")
        I(f"s_add_u32 s{sA}, s{sA}, {MB_G}")
        for z in range(6):
            I(f"s_add_u32 s{sB}, s{sA}, {16384*z}")
            I(f"s_add_u32 s{sPB+2*z}, s{pWS}, s{sB}")
            I(f"s_addc_u32 s{sPB+2*z+1}, s{pWS+1}, 0")

        def stageD(nz):
            def loads_D():
                for z in range(nz):
                    I(f"global_load_dwordx4 v[{40+4*z}:{43+4*z}], v32, s[{sPB+2*z}:{sPB+2*z+1}] sc1")
            self.poll(f"L_pollD{nz}", loads_D, list(range(40, 40 + 4 * nz)), 64)
            for z in range(nz):
                c = "0" if z == 0 else "v[66:69]"
                I(f"v_mfma_f32_16x16x32_bf16 v[66:69], v[{40+4*z}:{43+4*z}], v[{W2F+4*z}:{W2F+4*z+3}], {c}")
        I(f"s_cmp_lt_u32 s{sKW}, 3")
        I("s_cbranch_scc1 L_D6", when=lambda ctx, c: ctx["w"] < 3)
        stageD(5)
        I("s_branch L_Djoin")
        a.label("L_D6")
        stageD(6)
        a.label("L_Djoin")
        self.stamp(16)
        I("s_mov_b64 exec, 0xffff")
        I(f"ds_write_b32 v{vRED}, v66 offset:{RED}")
        I("s_mov_b64 exec, -1")
        I("s_waitcnt lgkmcnt(0)")
        self.barrier("B10")
        I(f"s_cmp_eq_u32 s{sW}, 0")
        I("s_cbranch_scc0 L_end", when=lambda ctx, c: ctx["w"] != 0)
        for k in range(8):
            I(f"ds_read_b32 v{60+k}, v{vN4} offset:{RED + 64*k}")
        I(f"s_lshl_b32 s{sA}, s2, 6")
        I(f"v_add_u32 v70, s{sA}, v{vN4}")
        I(f"ds_read_b32 v71, v70 offset:{HBUF}")
        I("s_waitcnt lgkmcnt(0)")
        self.tree_sum(range(60, 68), 60)
        self.RB(60)
        I(f"v_add_f32 v60, v60, v{B2F}")
        self.RB(60)
        I("v_add_f32 v60, v71, v60")
        I("v_cvt_pk_bf16_f32 v60, v60, v60")
        I("v_lshrrev_b32 v70, 1, v70")
        I("s_mov_b64 exec, 0xffff")
        I(f"global_store_short v70, v60, s[{pOUT}:{pOUT+1}]")
        I("s_mov_b64 exec, -1")
        I("s_branch L_end")

        a.label("L_vpath")
        if self.stamps:
            for n_, k_ in ((12, 12), (8, 13), (4, 14), (0, 15)):
                I(f"s_waitcnt vmcnt({n_})")
                self.stamp(k_)
        self.barrier("B3")
        self.barrier("B4")
        self.barrier("B5")
        self.stamp(9)
        P = 8
        I(f"s_lshl_b32 s{sA}, s{sKW}, 7")
        I(f"v_lshl_add_u32 v22, v{vR}, 5, s{sA}")
        I(f"ds_read_b128 v[{P}:{P+3}], v22 offset:{PLDS}")
        I(f"ds_read_b128 v[{P+4}:{P+7}], v22 offset:{PLDS+16}")
        I("s_waitcnt lgkmcnt(0)")
        ACC = 32
        for j in range(8):
            I(f"s_waitcnt vmcnt({14 - 2*j})")
            if j in (0, 3, 7):
                self.stamp({0: 5, 3: 6, 7: 7}[j])
            self.pair_dot(ACC, KV + 8 * j, KV + 8 * j + 4, P + j, j == 0, 16, 17)
        self.r_reduce(ACC, 20)
        I(f"v_lshlrev_b32 v22, 1, v{vC16}")
        I(f"v_lshl_add_u32 v22, v{vR}, 3, v22")
        I(f"s_lshl_b32 s{sA}, s{sKW}, 9")
        I(f"v_add_u32 v22, s{sA}, v22")
        I(f"ds_write_b64 v22, v[20:21] offset:{OPART}")
        I("s_waitcnt lgkmcnt(0)")
        self.stamp(10)
        self.barrier("B6")
        self.stamp(11)
        a.label("L_end")
        if self.stamps:
            self.stamp(17)
            I(f"s_and_b32 s{sA}, s{sW}, 7")
            I(f"s_cmp_eq_u32 s{sA}, 0")
            I("s_cbranch_scc0 L_end2", when=lambda ctx, c: ctx["w"] % 8 != 0)
            for k in range(20):
                I(f"v_writelane_b32 v1, s{78+k}, {k}")
            I(f"s_lshl_b32 s{sA}, s2, 1")
            I(f"s_lshr_b32 s{sB}, s{sW}, 3")
            I(f"s_add_u32 s{sA}, s{sA}, s{sB}")
            I(f"s_lshl_b32 s{sA}, s{sA}, 7")
            I(f"s_add_u32 s{sA}, s{sA}, {2 << 20}")
            I(f"s_add_u32 s{sX0}, s{pWS}, s{sA}")
            I(f"s_addc_u32 s{sX0+1}, s{pWS+1}, 0")
            I("v_and_b32 v2, 63, v0")
            I("v_lshlrev_b32 v2, 2, v2")
            I("s_mov_b64 exec, 0xfffff")
            I(f"global_store_dword v2, v1, s[{sX0}:{sX0+1}]")
        a.label("L_end2")
        I("s_endpgm")
        return a


def contexts():
    ctxs = []
    for wid in (0, 5, 40, 85, 86, 200, 255, 256, 260):
        for w in (0, 1, 2, 3, 7, 8, 15):
            ctxs.append(dict(name=f"id{wid}_w{w}", id=wid, w=w))
    return ctxs


def emit(path, **kw):
    g = G(**kw)
    a = g.build()
    rounds = a.resolve_hazards()
    res, errs = a.verify(contexts())
    for e in errs[:40]:
        print("VERIFY ERROR:", e)
    bars = {}
    for n, b in res.items():
        wid = n.split("_")[0]
        bars.setdefault(wid, set()).add(b)
    print("barrier counts per wg id:", {k: sorted(v) for k, v in bars.items()})
    print("instructions:", a.count(), "hazard rounds:", rounds)
    text = f"""; Fused decode layer: preLN + sliding-window cached attention + wo + preLN + squared-ReLU FFN
; @launch grid=(256,1,1) block=(1024,1,1) lds={LDS_BYTES}
.amdgcn_target "amdgcn-amd-amdhsa--gfx950"
.text
.globl {KERNEL}
.p2align 8
.type {KERNEL},@function
{KERNEL}:
{a.text()}
.section .rodata,"a"
.p2align 6
.amdhsa_kernel {KERNEL}
  .amdhsa_next_free_vgpr 128
  .amdhsa_next_free_sgpr 102
  .amdhsa_accum_offset 128
  .amdhsa_group_segment_fixed_size 0
  .amdhsa_kernarg_size 104
  .amdhsa_user_sgpr_count 2
  .amdhsa_user_sgpr_kernarg_segment_ptr 1
  .amdhsa_system_sgpr_workgroup_id_x 1
  .amdhsa_float_denorm_mode_32 3
  .amdhsa_float_denorm_mode_16_64 3
.end_amdhsa_kernel
"""
    open(path, "w").write(text)
    return errs


if __name__ == "__main__":
    ap = argparse.ArgumentParser()
    ap.add_argument("--out", default=f"cdna_kernels/{NAME}.s")
    ap.add_argument("--stop", default=None)
    ap.add_argument("--dbg", action="store_true")
    ap.add_argument("--no-nt", action="store_true")
    ap.add_argument("--stamps", action="store_true")
    ap.add_argument("--wq-mods", default="")
    args = ap.parse_args()
    errs = emit(args.out, stop_after=args.stop, dbg=args.dbg, kv_nt=not args.no_nt, stamps=args.stamps, wq_mods=args.wq_mods)
    sys.exit(1 if errs else 0)
```

```python
import argparse
import sys

sys.path.insert(0, "dev")
from asmlib import Asm
from gen_kernel import G as G1, LOG2E, SCALE

NAME = "sequential_preLN__sliding_block_cached__dense_activation_squared_relu__decode"
KERNEL = NAME + "_kernel"

QPART, QBF, WSTAT, GSTAT, PLDS, OPART, RED, HBUF, ABUF, GBUF = 0, 4096, 4352, 4416, 4480, 5504, 9600, 10624, 12672, 13696
FLG0, FLG1, FLG2 = 4432, 4436, 4440
T_WO, T_W1, T_W2 = 13824, 13824 + 16384, 13824 + 49152
LDS_BYTES = 13824 + 81920

MBS = 2048
MB_O, MB_STAT, MB_ATT, MB_G = 0, 1024, 1152, 1280
PART_OFF = 512 << 10
EPOCH_OFF = 1 << 20
DBG_OFF = 2 << 20
STAMP_OFF = 3 << 20

SPIN = 30000
N_F1, N_F2 = 43, 32

sW, sG, sC, sHL, sS, sH, sKW = 3, 4, 5, 6, 7, 8, 9
sMB, sTMP = 10, 12
sSELLO, sSELHI = 14, 15
pX, pKC, pVC, pWQ, pWO, pBX, pW1, pB1, pW2, pB2, pOUT, pDBG, pWS = 16, 18, 20, 22, 24, 26, 28, 30, 32, 34, 36, 38, 40
sKVB, sWQB = 42, 44
sM3, sM2, sM1, sM0 = 46, 48, 50, 52
sA, sB, sSPIN, sT = 54, 55, 56, 57
sPB = 58
sX0, sX1 = 74, 76
sE0, sE1 = 98, 99


class G(G1):
    def __init__(self, stop_after=None, dbg=False, stamps=False, wo_mods="", wf_mods="nt"):
        super().__init__(stop_after=stop_after, dbg=dbg, kv_nt=True, stamps=stamps)
        self.wo_mods, self.wf_mods = wo_mods, wf_mods
        self.wq_mods2 = ""

    def poll_g(self, stem, emit_loads, tag_regs, tmp):
        I, a = self.I, self.a
        La, Ld = a.newlabel(stem), a.newlabel(stem + "_ok")
        I(f"s_mov_b32 s{sSPIN}, {SPIN}")
        a.label(La)
        self.reset_tmpbase()
        emit_loads()
        I("s_waitcnt vmcnt(0)")
        first = True
        for t in tag_regs:
            if first:
                I(f"v_xor_b32 v{tmp}, s{sE0}, v{t}")
                I(f"v_xor_b32 v{tmp+1}, s{sE1}, v{t+1}")
                I(f"v_or_b32 v{tmp}, v{tmp}, v{tmp+1}")
                first = False
            else:
                I(f"v_xor_b32 v{tmp+1}, s{sE0}, v{t}")
                I(f"v_xor_b32 v{tmp+2}, s{sE1}, v{t+1}")
                I(f"v_or3_b32 v{tmp}, v{tmp}, v{tmp+1}, v{tmp+2}")
        I(f"v_cmp_ne_u32 vcc, 0, v{tmp}")
        I(f"s_cbranch_vccz {Ld}", when=lambda ctx, cnt: cnt >= 1)
        I(f"s_sub_u32 s{sSPIN}, s{sSPIN}, 1")
        I(f"s_cmp_lg_u32 s{sSPIN}, 0")
        I(f"s_cbranch_scc1 {La}", when=lambda ctx, cnt: True)
        a.label(Ld)
        self.reset_tmpbase()

    def lds_signal(self, flag, vz, vo):
        I = self.I
        I(f"v_mov_b32 v{vz}, 0")
        I(f"v_mov_b32 v{vo}, 1")
        I("s_mov_b64 exec, 1")
        I(f"ds_add_u32 v{vz}, v{vo} offset:{flag}")
        I("s_mov_b64 exec, -1")

    def lds_wait(self, stem, flag, target, vz, vt):
        I, a = self.I, self.a
        L = a.newlabel(stem)
        I(f"v_mov_b32 v{vz}, 0")
        a.label(L)
        I(f"ds_read_b32 v{vt}, v{vz} offset:{flag}")
        I("s_waitcnt lgkmcnt(0)")
        I(f"v_readfirstlane_b32 s{sT}, v{vt}")
        I(f"s_cmp_lt_u32 s{sT}, {target}")
        I(f"s_cbranch_scc1 {L}", when=lambda ctx, cnt: cnt < 1)

    def dbg_store(self, op, voff, data, off):
        if self.dbg:
            self.vmem(op, data, voff, pWS, DBG_OFF + off, store=True)
            self.reset_tmpbase()

    def build_frags(self, vaddr, dst, deltas, rowb, tmp):
        I = self.I
        for f, dl in enumerate(deltas):
            tt = tmp + 8 * (f % 3)
            for i in range(8):
                I(f"ds_read_u16 v{tt+i}, v{vaddr} offset:{dl + i * rowb}")
            I("s_waitcnt lgkmcnt(0)")
            for j in range(4):
                I(f"v_lshl_or_b32 v{dst+4*f+j}, v{tt+2*j+1}, 16, v{tt+2*j}")

    def build(self):
        I, a = self.I, self.a
        vLANE, vR, vC16 = 1, 2, 3
        KV = 64
        isK = lambda ctx: ctx["w"] < 8

        I("s_cmp_ge_u32 s2, 256")
        I("s_cbranch_scc1 L_end2", when=lambda ctx, c: ctx["id"] >= 256)
        I("s_load_dwordx16 s[16:31], s[0:1], 0")
        I("s_load_dwordx8 s[32:39], s[0:1], 64")
        I("s_load_dwordx2 s[40:41], s[0:1], 96")
        I(f"v_and_b32 v{vLANE}, 63, v0")
        I("v_lshrrev_b32 v4, 6, v0")
        I(f"v_lshrrev_b32 v{vR}, 4, v{vLANE}")
        I(f"v_and_b32 v{vC16}, 15, v{vLANE}")
        I(f"v_lshlrev_b32 v{vC16}, 4, v{vC16}")
        I(f"v_readfirstlane_b32 s{sW}, v4")
        I(f"s_and_b32 s{sG}, s2, 7")
        I(f"s_lshr_b32 s{sC}, s2, 3")
        I(f"s_and_b32 s{sHL}, s{sC}, 3")
        I(f"s_lshr_b32 s{sS}, s{sC}, 2")
        I(f"s_lshl_b32 s{sH}, s{sG}, 2")
        I(f"s_add_u32 s{sH}, s{sH}, s{sHL}")
        I(f"s_and_b32 s{sKW}, s{sW}, 7")
        I(f"s_mov_b32 s{sSELLO}, 0x05040100")
        I(f"s_mov_b32 s{sSELHI}, 0x07060302")
        vKVOFF = 4
        I(f"v_lshl_add_u32 v{vKVOFF}, v{vR}, 12, v{vC16}")
        I(f"s_lshl_b32 s{sA}, s{sH}, 23")
        I(f"s_add_u32 s{sA}, s{sA}, 0x700000")
        I(f"s_lshl_b32 s{sB}, s{sS}, 17")
        I(f"s_add_u32 s{sA}, s{sA}, s{sB}")
        I(f"s_lshl_b32 s{sB}, s{sKW}, 14")
        I(f"s_add_u32 s{sA}, s{sA}, s{sB}")
        I("s_waitcnt lgkmcnt(0)")
        if self.stamps:
            for k in range(20):
                I(f"s_mov_b32 s{78+k}, 0")
        self.stamp(0)
        I(f"s_add_u32 s{sX0}, s{pWS}, {EPOCH_OFF}")
        I(f"s_addc_u32 s{sX0+1}, s{pWS+1}, 0")
        I(f"s_load_dwordx2 s[{sE0}:{sE1}], s[{sX0}:{sX0+1}], 0")
        I(f"s_cmp_lt_u32 s{sW}, 8")
        I(f"s_cselect_b32 s{sKVB}, s{pKC}, s{pVC}")
        I(f"s_cselect_b32 s{sKVB+1}, s{pKC+1}, s{pVC+1}")
        I(f"s_add_u32 s{sKVB}, s{sKVB}, s{sA}")
        I(f"s_addc_u32 s{sKVB+1}, s{sKVB+1}, 0")
        I(f"s_lshl_b32 s{sA}, s2, 11")
        I(f"s_add_u32 s{sMB}, s{pWS}, s{sA}")
        I(f"s_addc_u32 s{sMB+1}, s{pWS+1}, 0")

        def kv_loads():
            for i in range(16):
                self.vmem("global_load_dwordx4", f"v[{KV+4*i}:{KV+4*i+3}]", vKVOFF, sKVB, i * 256, "nt")

        I(f"s_cmp_lt_u32 s{sW}, 8")
        I("s_cbranch_scc0 L_vpath", when=lambda ctx, c: not isK(ctx))

        self.barrier("B0")
        XT, B1F, B2F, HT = 56, 57, 58, 59
        vE = 5
        I(f"v_and_b32 v6, 31, v{vLANE}")
        I(f"v_lshrrev_b32 v7, 5, v{vLANE}")
        I(f"v_lshl_or_b32 v{vE}, v6, 1, v7")
        I(f"s_lshl_b32 s{sA}, s{sKW}, 6")
        I(f"v_add_u32 v{vE}, s{sA}, v{vE}")
        I(f"v_lshlrev_b32 v6, 1, v{vE}")
        I(f"global_load_ushort v{XT}, v6, s[{pX}:{pX+1}]")
        TW = 8
        I("v_lshrrev_b32 v6, 1, v0")
        I("v_lshlrev_b32 v6, 10, v6")
        I("v_and_b32 v7, 1, v0")
        I("v_lshl_add_u32 v6, v7, 4, v6")
        I(f"s_lshl_b32 s{sA}, s{sG}, 19")
        I(f"s_lshl_b32 s{sB}, s{sC}, 5")
        I(f"s_add_u32 s{sA}, s{sA}, s{sB}")
        I(f"s_add_u32 s{sX0}, s{pWO}, s{sA}")
        I(f"s_addc_u32 s{sX0+1}, s{pWO+1}, 0")
        self.reset_tmpbase()
        for k in range(2):
            self.vmem("global_load_dwordx4", f"v[{TW+4*k}:{TW+4*k+3}]", 6, sX0, k * 256 * 1024, self.wo_mods)
        I(f"s_cmp_ge_u32 s2, {N_F1}")
        I("s_cbranch_scc1 L_tiles_issued", when=lambda ctx, c: ctx["id"] >= N_F1)
        I(f"v_and_b32 v7, 31, v{vLANE}")
        I(f"s_lshl_b32 s{sA}, s2, 6")
        I(f"v_lshl_add_u32 v7, v7, 1, s{sA}")
        I(f"global_load_ushort v{B1F}, v7, s[{pB1}:{pB1+1}]")
        I("v_lshrrev_b32 v6, 2, v0")
        I("v_mul_u32_u24 v6, 2752, v6")
        I("v_and_b32 v7, 3, v0")
        I("v_lshl_add_u32 v6, v7, 4, v6")
        I(f"s_add_u32 s{sX0}, s{pW1}, s{sA}")
        I(f"s_addc_u32 s{sX0+1}, s{pW1+1}, 0")
        self.reset_tmpbase()
        for k in range(4):
            self.vmem("global_load_dwordx4", f"v[{TW+8+4*k}:{TW+8+4*k+3}]", 6, sX0, k * 128 * 2752, self.wf_mods)
        I("v_lshlrev_b32 v6, 4, v0")
        I(f"s_lshl_b32 s{sA}, s2, 15")
        I(f"s_add_u32 s{sX0}, s{pW2}, s{sA}")
        I(f"s_addc_u32 s{sX0+1}, s{pW2+1}, 0")
        self.reset_tmpbase()
        for k in range(4):
            self.vmem("global_load_dwordx4", f"v[{TW+24+4*k}:{TW+24+4*k+3}]", 6, sX0, k * 8192, self.wf_mods)
        I(f"s_cmp_ge_u32 s2, {N_F2}")
        I("s_cbranch_scc1 L_tiles_issued", when=lambda ctx, c: ctx["id"] >= N_F2)
        I(f"v_and_b32 v7, 15, v{vLANE}")
        I(f"s_lshl_b32 s{sA}, s2, 5")
        I(f"v_lshl_add_u32 v7, v7, 1, s{sA}")
        I(f"global_load_ushort v{B2F}, v7, s[{pB2}:{pB2+1}]")
        a.label("L_tiles_issued")
        self.reset_tmpbase()
        kv_loads()
        self.lds_signal(FLG2, 6, 7)
        self.stamp(1)
        I("s_waitcnt vmcnt(16)")
        self.stamp(2)
        I("v_lshlrev_b32 v6, 4, v0")
        for k in range(2):
            I(f"ds_write_b128 v6, v[{TW+4*k}:{TW+4*k+3}] offset:{T_WO + 8192*k}")
        I(f"s_cmp_ge_u32 s2, {N_F1}")
        I("s_cbranch_scc1 L_tiles_done", when=lambda ctx, c: ctx["id"] >= N_F1)
        for k in range(4):
            I(f"ds_write_b128 v6, v[{TW+8+4*k}:{TW+8+4*k+3}] offset:{T_W1 + 8192*k}")
        I(f"v_add_u32 v7, {T_W2}, v6")
        for k in range(4):
            I(f"ds_write_b128 v7, v[{TW+24+4*k}:{TW+24+4*k+3}] offset:{8192*k}")
        a.label("L_tiles_done")
        I("s_waitcnt lgkmcnt(0)")
        I(f"s_add_u32 s{sE0}, s{sE0}, 1")
        I(f"s_add_u32 s{sE1}, s{sE1}, 1")
        self.lds_wait("L_wait_q", FLG1, 2, 6, 7)
        self.stamp(4)

        Q, SC0 = 8, 16
        I(f"ds_read_b128 v[{Q}:{Q+3}], v{vC16} offset:{QBF}")
        for bit, sm in ((8, sM3), (4, sM2), (2, sM1), (1, sM0)):
            I(f"v_and_b32 v12, {bit}, v{vLANE}")
            I(f"v_cmp_ne_u32 s[{sm}:{sm+1}], 0, v12")
        I("s_waitcnt lgkmcnt(0)")
        for i in range(16):
            I(f"s_waitcnt vmcnt({15 - i})")
            k0 = KV + 4 * i
            I(f"v_dot2_f32_bf16 v{SC0+i}, v{k0}, v{Q}, 0")
            for t in range(1, 4):
                I(f"v_dot2_f32_bf16 v{SC0+i}, v{k0+t}, v{Q+t}, v{SC0+i}")
        self.stamp(5)
        cur = [SC0 + i for i in range(16)]
        tmpk = 32
        for sm, pat in ((sM3, "row_mirror"), (sM2, "row_half_mirror"), (sM1, "quad_perm:[3,2,1,0]"), (sM0, "quad_perm:[1,0,3,2]")):
            h = len(cur) // 2
            nxt = []
            for i in range(h):
                I(f"v_cndmask_b32 v{tmpk+i}, v{cur[i+h]}, v{cur[i]}, s[{sm}:{sm+1}]")
            for i in range(h):
                I(f"v_cndmask_b32 v{cur[i]}, v{cur[i]}, v{cur[i+h]}, s[{sm}:{sm+1}]")
            for i in range(h):
                I(f"v_add_f32_dpp v{cur[i]}, v{tmpk+i}, v{cur[i]} {pat} row_mask:0xf bank_mask:0xf")
                nxt.append(cur[i])
            cur = nxt
        SC, E = 8, 9
        I(f"v_mov_b32 v{SC}, v{cur[0]}")
        self.RB(SC)
        I(f"v_mul_f32 v{SC}, {SCALE}, v{SC}")
        self.RB(SC)
        if self.dbg:
            I("v_lshlrev_b32 v22, 2, v0")
            I(f"s_lshl_b32 s{sA}, s2, 11")
            I(f"v_add_u32 v22, s{sA}, v22")
            self.dbg_store("global_store_dword", 22, f"v{SC}", 1 << 17)
        I(f"v_mov_b32 v10, v{SC}")
        self.wave_reduce("max", 10, sA)
        I(f"v_subrev_f32 v{E}, s{sA}, v{SC}")
        I(f"v_mul_f32 v{E}, {LOG2E}, v{E}")
        I(f"v_exp_f32 v{E}, v{E}")
        I(f"v_mov_b32 v10, v{E}")
        self.wave_reduce("add", 10, sB)
        I(f"v_mov_b32 v10, s{sA}")
        I(f"v_mov_b32 v11, s{sB}")
        I(f"s_lshl_b32 s{sT}, s{sW}, 3")
        I(f"v_mov_b32 v12, s{sT}")
        I("s_mov_b64 exec, 1")
        I(f"ds_write_b64 v12, v[10:11] offset:{WSTAT}")
        I("s_mov_b64 exec, -1")
        I("s_waitcnt lgkmcnt(0)")
        self.barrier("B3")
        self.stamp(6)
        I(f"s_cmp_eq_u32 s{sW}, 0")
        I("s_cbranch_scc0 L_stat_skip", when=lambda ctx, c: ctx["w"] != 0)
        I(f"v_and_b32 v12, 7, v{vLANE}")
        I("v_lshlrev_b32 v13, 3, v12")
        I(f"ds_read_b64 v[16:17], v13 offset:{WSTAT}")
        I("s_waitcnt lgkmcnt(0)")
        self.merge8(16, 17, 14, 15)
        I(f"v_mov_b32 v18, s{sE0}")
        I(f"v_mov_b32 v19, s{sE1}")
        I("v_mov_b32 v13, 0")
        I("s_mov_b64 exec, 1")
        I(f"global_store_dwordx4 v13, v[16:19], s[{sMB}:{sMB+1}] offset:{MB_STAT} sc1")
        I("s_mov_b64 exec, -1")
        I(f"s_lshl_b32 s{sA}, s{sHL}, 14")
        I(f"s_lshl_b32 s{sB}, s{sG}, 11")
        I(f"s_add_u32 s{sA}, s{sA}, s{sB}")
        I(f"s_add_u32 s{sX0}, s{pWS}, s{sA}")
        I(f"s_addc_u32 s{sX0+1}, s{pWS+1}, 0")
        I("v_lshlrev_b32 v13, 16, v12")
        self.poll_g("L_stat_poll",
                    lambda: I(f"global_load_dwordx4 v[16:19], v13, s[{sX0}:{sX0+1}] offset:{MB_STAT} sc1"), [18], 20)
        self.stamp(8)
        self.merge8(16, 17, 14, 15)
        I("v_rcp_f32 v17, v17")
        I("v_mov_b32 v13, 0")
        I("s_mov_b64 exec, 1")
        I(f"ds_write_b64 v13, v[16:17] offset:{GSTAT}")
        I("s_mov_b64 exec, -1")
        I("s_waitcnt lgkmcnt(0)")
        a.label("L_stat_skip")
        self.barrier("B4")
        I("v_mov_b32 v13, 0")
        I(f"ds_read_b64 v[10:11], v13 offset:{GSTAT}")
        I("s_waitcnt lgkmcnt(0)")
        I(f"v_sub_f32 v{E}, v{SC}, v10")
        I(f"v_mul_f32 v{E}, {LOG2E}, v{E}")
        I(f"v_exp_f32 v{E}, v{E}")
        I(f"v_mul_f32 v{E}, v{E}, v11")
        I(f"v_cvt_pk_bf16_f32 v{E}, v{E}, v{E}")
        I("v_lshlrev_b32 v13, 1, v0")
        I(f"ds_write_b16 v13, v{E} offset:{PLDS}")
        I("s_waitcnt lgkmcnt(0)")
        self.barrier("B5")
        self.stamp(9)

        WOF, W1F, W2F, TMPF = 64, 72, 88, 104
        vQ, vN, vFA = 2, 3, 4
        I(f"v_and_b32 v{vN}, 15, v{vLANE}")
        I(f"v_lshlrev_b32 v{vFA}, 8, v{vQ}")
        I(f"v_lshl_add_u32 v{vFA}, v{vN}, 1, v{vFA}")
        I(f"s_lshl_b32 s{sA}, s{sKW}, 11")
        I(f"s_add_u32 s{sA}, s{sA}, {T_WO}")
        I(f"v_add_u32 v6, s{sA}, v{vFA}")
        self.build_frags(6, WOF, [0, 1024], 32, TMPF)
        I(f"s_cmp_ge_u32 s2, {N_F1}")
        I("s_cbranch_scc1 L_frags_done", when=lambda ctx, c: ctx["id"] >= N_F1)
        I(f"v_lshlrev_b32 v{vFA}, 9, v{vQ}")
        I(f"v_lshl_add_u32 v{vFA}, v{vN}, 1, v{vFA}")
        I(f"s_lshl_b32 s{sA}, s{sKW}, 12")
        I(f"s_add_u32 s{sA}, s{sA}, {T_W1}")
        I(f"v_add_u32 v6, s{sA}, v{vFA}")
        self.build_frags(6, W1F, [0, 32, 2048, 2048 + 32], 64, TMPF)
        I(f"v_lshlrev_b32 v{vFA}, 13, v{vQ}")
        I(f"v_lshl_add_u32 v{vFA}, v{vN}, 1, v{vFA}")
        I(f"s_lshl_b32 s{sA}, s{sKW}, 7")
        I(f"s_add_u32 s{sA}, s{sA}, {T_W2}")
        I(f"v_add_u32 v6, s{sA}, v{vFA}")
        self.build_frags(6, W2F, [0, 32, 64, 96], 1024, TMPF)
        I(f"v_lshlrev_b32 v{XT}, 16, v{XT}")
        I(f"v_lshlrev_b32 v{B1F}, 16, v{B1F}")
        I(f"s_cmp_ge_u32 s2, {N_F2}")
        I("s_cbranch_scc1 L_frags_done", when=lambda ctx, c: ctx["id"] >= N_F2)
        I(f"v_lshlrev_b32 v{B2F}, 16, v{B2F}")
        a.label("L_frags_done")
        vPR16, vAF, vRED, vN4, vE2 = 48, 49, 50, 51, 52
        I(f"v_and_b32 v{vPR16}, 31, v{vLANE}")
        I(f"v_lshlrev_b32 v{vPR16}, 4, v{vPR16}")
        I(f"s_lshl_b32 s{sA}, s{sKW}, 7")
        I(f"v_lshl_add_u32 v{vAF}, v{vQ}, 4, s{sA}")
        I(f"s_lshl_b32 s{sA}, s{sKW}, 6")
        I(f"v_lshl_add_u32 v{vRED}, v{vN}, 2, s{sA}")
        I(f"v_lshlrev_b32 v{vN4}, 2, v{vN}")
        I(f"v_lshlrev_b32 v{vE2}, 1, v{vE}")
        self.stamp(10)
        self.barrier("B6")
        self.stamp(11)

        I(f"s_cmp_eq_u32 s{sW}, 0")
        I("s_cbranch_scc0 L_o_skip", when=lambda ctx, c: ctx["w"] != 0)
        I(f"v_lshlrev_b32 v8, 3, v{vLANE}")
        for k in range(8):
            I(f"ds_read_b64 v[{16+2*k}:{17+2*k}], v8 offset:{OPART + 512*k}")
        I("s_waitcnt lgkmcnt(0)")
        self.tree_sum(range(16, 32, 2), 16)
        self.tree_sum(range(17, 32, 2), 17)
        I(f"v_mov_b32 v18, s{sE0}")
        I(f"v_mov_b32 v19, s{sE1}")
        I(f"v_lshlrev_b32 v8, 4, v{vLANE}")
        I(f"global_store_dwordx4 v8, v[16:19], s[{sMB}:{sMB+1}] offset:{MB_O} sc1")
        a.label("L_o_skip")
        if self.stop_after == "A":
            I("s_branch L_end")

        I(f"s_lshr_b32 s{sA}, s{sKW}, 1")
        I(f"s_lshl_b32 s{sA}, s{sA}, 14")
        I(f"s_lshl_b32 s{sB}, s{sG}, 11")
        I(f"s_add_u32 s{sA}, s{sA}, s{sB}")
        I(f"s_and_b32 s{sB}, s{sKW}, 1")
        I(f"s_lshl_b32 s{sB}, s{sB}, 9")
        I(f"s_add_u32 s{sA}, s{sA}, s{sB}")
        for s_ in range(4):
            I(f"s_add_u32 s{sB}, s{sA}, {65536*s_}")
            I(f"s_add_u32 s{sPB+2*s_}, s{pWS}, s{sB}")
            I(f"s_addc_u32 s{sPB+2*s_+1}, s{pWS+1}, 0")
        I(f"v_lshrrev_b32 v8, 5, v{vLANE}")
        I("v_lshlrev_b32 v8, 18, v8")
        I(f"v_add_u32 v8, v8, v{vPR16}")

        def loads4(voff, off):
            def f():
                for s_ in range(4):
                    I(f"global_load_dwordx4 v[{16+4*s_}:{19+4*s_}], v{voff}, s[{sPB+2*s_}:{sPB+2*s_+1}]"
                      + (f" offset:{off}" if off else "") + " sc1")
            return f

        def sum4_swap():
            I("v_add_f32 v16, v16, v20")
            I("v_add_f32 v24, v24, v28")
            I("v_add_f32 v17, v17, v21")
            I("v_add_f32 v25, v25, v29")
            I("v_add_f32 v16, v16, v24")
            I("v_add_f32 v17, v17, v25")
            I("v_permlane32_swap_b32 v16, v17")
            I("v_add_f32 v16, v16, v17")

        self.poll_g("L_pollB", loads4(8, MB_O), [18, 22, 26, 30], 32)
        self.stamp(12)
        sum4_swap()
        I("v_cvt_pk_bf16_f32 v16, v16, v16")
        I(f"ds_write_b16 v{vE2}, v16 offset:{ABUF}")
        I("s_waitcnt lgkmcnt(0)")
        I(f"ds_read_b128 v[24:27], v{vAF} offset:{ABUF}")
        I(f"ds_read_b128 v[28:31], v{vAF} offset:{ABUF+64}")
        I("s_waitcnt lgkmcnt(0)")
        I(f"v_mfma_f32_16x16x32_bf16 v[32:35], v[24:27], v[{WOF}:{WOF+3}], 0")
        I(f"v_mfma_f32_16x16x32_bf16 v[32:35], v[28:31], v[{WOF+4}:{WOF+7}], v[32:35]")
        I("s_mov_b64 exec, 0xffff")
        I(f"ds_write_b32 v{vRED}, v32 offset:{RED}")
        I("s_mov_b64 exec, -1")
        I("s_waitcnt lgkmcnt(0)")
        self.barrier("B7")
        I(f"s_cmp_eq_u32 s{sW}, 0")
        I("s_cbranch_scc0 L_B_done", when=lambda ctx, c: ctx["w"] != 0)
        for k in range(8):
            I(f"ds_read_b32 v{36+k}, v{vN4} offset:{RED + 64*k}")
        I("s_waitcnt lgkmcnt(0)")
        self.tree_sum(range(36, 44), 36)
        I("v_mov_b32_dpp v37, v36 quad_perm:[1,0,3,2] row_mask:0xf bank_mask:0xf")
        I(f"v_mov_b32 v38, s{sE0}")
        I(f"v_mov_b32 v39, s{sE1}")
        I(f"v_lshlrev_b32 v40, 3, v{vN}")
        I("s_mov_b64 exec, 0x5555")
        I(f"global_store_dwordx4 v40, v[36:39], s[{sMB}:{sMB+1}] offset:{MB_ATT} sc1")
        I("s_mov_b64 exec, -1")
        a.label("L_B_done")
        self.stamp(13)
        I(f"s_cmp_ge_u32 s2, {N_F1}")
        I("s_cbranch_scc1 L_end", when=lambda ctx, c: ctx["id"] >= N_F1)
        if self.stop_after == "B":
            I("s_branch L_end")

        I(f"v_and_b32 v8, 31, v{vLANE}")
        I("v_lshrrev_b32 v9, 3, v8")
        I("v_lshlrev_b32 v9, 14, v9")
        I("v_and_b32 v8, 7, v8")
        I("v_lshl_add_u32 v9, v8, 4, v9")
        I(f"v_lshrrev_b32 v8, 5, v{vLANE}")
        I("v_lshl_add_u32 v8, v8, 13, v9")
        I(f"s_lshl_b32 s{sA}, s{sKW}, 16")
        I(f"s_add_u32 s{sA}, s{sA}, {MB_ATT}")
        for gq in range(4):
            I(f"s_add_u32 s{sB}, s{sA}, {2048*gq}")
            I(f"s_add_u32 s{sPB+2*gq}, s{pWS}, s{sB}")
            I(f"s_addc_u32 s{sPB+2*gq+1}, s{pWS+1}, 0")
        self.poll_g("L_pollC", loads4(8, 0), [18, 22, 26, 30], 32)
        self.stamp(14)
        sum4_swap()
        self.RB(16)
        I(f"v_add_f32 v{HT}, v{XT}, v16")
        self.RB(HT)
        I(f"v_lshlrev_b32 v8, 2, v{vE}")
        I(f"ds_write_b32 v8, v{HT} offset:{HBUF}")
        I("s_waitcnt lgkmcnt(0)")
        self.barrier("B8")
        I(f"v_lshlrev_b32 v8, 5, v{vLANE}")
        I(f"ds_read_b128 v[16:19], v8 offset:{HBUF}")
        I(f"ds_read_b128 v[20:23], v8 offset:{HBUF+16}")
        I("s_waitcnt lgkmcnt(0)")
        S, MEAN, VV, SD, RC = 24, 25, 26, 27, 28
        self.ln_scalars(16, S, MEAN, VV, SD, RC)
        I(f"v_mov_b32 v29, v{HT}")
        self.ln_apply(29, 30, 31, MEAN, SD, RC)
        I("v_cvt_pk_bf16_f32 v29, v29, v29")
        I(f"ds_write_b16 v{vE2}, v29 offset:{ABUF}")
        I("s_waitcnt lgkmcnt(0)")
        I(f"ds_read_b128 v[24:27], v{vAF} offset:{ABUF}")
        I(f"ds_read_b128 v[28:31], v{vAF} offset:{ABUF+64}")
        I("s_waitcnt lgkmcnt(0)")
        I(f"v_mfma_f32_16x16x32_bf16 v[32:35], v[24:27], v[{W1F}:{W1F+3}], 0")
        I(f"v_mfma_f32_16x16x32_bf16 v[36:39], v[24:27], v[{W1F+4}:{W1F+7}], 0")
        I(f"v_mfma_f32_16x16x32_bf16 v[32:35], v[28:31], v[{W1F+8}:{W1F+11}], v[32:35]")
        I(f"v_mfma_f32_16x16x32_bf16 v[36:39], v[28:31], v[{W1F+12}:{W1F+15}], v[36:39]")
        I(f"s_lshl_b32 s{sA}, s{sKW}, 7")
        I(f"v_lshl_add_u32 v8, v{vN}, 2, s{sA}")
        I("s_mov_b64 exec, 0xffff")
        I(f"ds_write_b32 v8, v32 offset:{RED}")
        I(f"ds_write_b32 v8, v36 offset:{RED+64}")
        I("s_mov_b64 exec, -1")
        I("s_waitcnt lgkmcnt(0)")
        self.barrier("B9")
        I(f"s_cmp_eq_u32 s{sW}, 0")
        I("s_cbranch_scc0 L_C_done", when=lambda ctx, c: ctx["w"] != 0)
        I(f"v_and_b32 v8, 31, v{vLANE}")
        I("v_lshlrev_b32 v8, 2, v8")
        for k in range(8):
            I(f"ds_read_b32 v{36+k}, v8 offset:{RED + 128*k}")
        I("s_waitcnt lgkmcnt(0)")
        self.tree_sum(range(36, 44), 36)
        self.RB(36)
        I(f"v_add_f32 v36, v36, v{B1F}")
        self.RB(36)
        I("v_max_f32 v36, 0, v36")
        I("v_mul_f32 v36, v36, v36")
        I("v_cvt_pk_bf16_f32 v36, v36, v36")
        I("v_lshrrev_b32 v8, 1, v8")
        I("s_mov_b32 exec_hi, 0")
        I(f"ds_write_b16 v8, v36 offset:{GBUF}")
        I("s_mov_b32 exec_hi, -1")
        if self.dbg:
            I("v_lshlrev_b32 v9, 16, v36")
            I(f"v_and_b32 v8, 31, v{vLANE}")
            I("v_lshlrev_b32 v8, 2, v8")
            I(f"s_lshl_b32 s{sA}, s2, 7")
            I(f"v_add_u32 v8, s{sA}, v8")
            I("s_mov_b32 exec_hi, 0")
            self.dbg_store("global_store_dword", 8, "v9", 1 << 20 >> 1)
            I("s_mov_b32 exec_hi, -1")
        I("s_waitcnt lgkmcnt(0)")
        a.label("L_C_done")
        self.barrier("B9b")
        self.stamp(15)
        I(f"v_lshlrev_b32 v8, 4, v{vQ}")
        I(f"ds_read_b128 v[24:27], v8 offset:{GBUF}")
        for qq, sm in ((1, sM3), (2, sM2), (3, sM1)):
            I(f"v_cmp_eq_u32 s[{sm}:{sm+1}], {qq}, v{vQ}")
        I("s_waitcnt lgkmcnt(0)")
        for tt in range(4):
            I(f"v_mfma_f32_16x16x32_bf16 v[{28+4*tt}:{31+4*tt}], v[24:27], v[{W2F+4*tt}:{W2F+4*tt+3}], 0")
        I("v_mov_b32 v44, v28")
        I(f"v_cndmask_b32 v44, v44, v32, s[{sM3}:{sM3+1}]")
        I(f"v_cndmask_b32 v44, v44, v36, s[{sM2}:{sM2+1}]")
        I(f"v_cndmask_b32 v44, v44, v40, s[{sM1}:{sM1+1}]")
        I("v_mov_b32_dpp v45, v44 quad_perm:[1,0,3,2] row_mask:0xf bank_mask:0xf")
        I(f"v_mov_b32 v46, s{sE0}")
        I(f"v_mov_b32 v47, s{sE1}")
        I(f"s_lshl_b32 s{sA}, s2, 12")
        I(f"s_lshl_b32 s{sB}, s{sKW}, 9")
        I(f"s_add_u32 s{sA}, s{sA}, s{sB}")
        I(f"s_add_u32 s{sA}, s{sA}, {PART_OFF}")
        I(f"s_add_u32 s{sX0}, s{pWS}, s{sA}")
        I(f"s_addc_u32 s{sX0+1}, s{pWS+1}, 0")
        I(f"v_lshlrev_b32 v8, 3, v{vLANE}")
        I("s_mov_b32 exec_lo, 0x55555555")
        I("s_mov_b32 exec_hi, 0x55555555")
        I(f"global_store_dwordx4 v8, v[44:47], s[{sX0}:{sX0+1}] sc1")
        I("s_mov_b64 exec, -1")
        I(f"s_cmp_ge_u32 s2, {N_F2}")
        I("s_cbranch_scc1 L_end", when=lambda ctx, c: ctx["id"] >= N_F2)
        if self.stop_after == "C":
            I("s_branch L_end")

        I(f"s_cmp_ge_u32 s{sKW}, 6")
        I("s_cbranch_scc1 L_D2_skip", when=lambda ctx, c: ctx["w"] >= 6)
        I("v_lshrrev_b32 v8, 3, v0")
        I("v_lshlrev_b32 v8, 12, v8")
        I("v_and_b32 v9, 7, v0")
        I("v_lshl_add_u32 v8, v9, 4, v8")
        I(f"s_lshl_b32 s{sA}, s2, 7")
        I(f"s_add_u32 s{sA}, s{sA}, {PART_OFF}")
        I(f"s_add_u32 s{sX0}, s{pWS}, s{sA}")
        I(f"s_addc_u32 s{sX0+1}, s{pWS+1}, 0")
        I("v_mov_b32 v16, 0")
        I("v_mov_b32 v17, 0")
        I(f"v_cmp_gt_u32 vcc, {43*8}, v0")
        I(f"s_and_saveexec_b64 s[{sX1}:{sX1+1}], vcc")
        self.poll_g("L_pollD", lambda: I(f"global_load_dwordx4 v[16:19], v8, s[{sX0}:{sX0+1}] sc1"), [18], 20)
        I(f"s_mov_b64 exec, s[{sX1}:{sX1+1}]")
        self.stamp(16)
        I("v_add_f32_dpp v16, v16, v16 row_ror:8 row_mask:0xf bank_mask:0xf")
        I("v_add_f32_dpp v17, v17, v17 row_ror:8 row_mask:0xf bank_mask:0xf")
        I("v_permlane32_swap_b32 v16, v17")
        I("v_add_f32 v16, v16, v17")
        I("v_mov_b32 v17, v16")
        I("v_permlane16_swap_b32 v16, v17")
        I("v_add_f32 v16, v16, v17")
        I(f"v_lshrrev_b32 v8, 5, v{vLANE}")
        I("v_lshl_or_b32 v8, v9, 1, v8")
        I(f"s_lshl_b32 s{sA}, s{sKW}, 6")
        I(f"v_lshl_add_u32 v8, v8, 2, s{sA}")
        I("s_mov_b32 exec_lo, 0xff")
        I("s_mov_b32 exec_hi, 0xff")
        I(f"ds_write_b32 v8, v16 offset:{RED}")
        I("s_mov_b64 exec, -1")
        I("s_waitcnt lgkmcnt(0)")
        a.label("L_D2_skip")
        self.barrier("B10")
        I(f"s_cmp_eq_u32 s{sW}, 0")
        I("s_cbranch_scc0 L_end", when=lambda ctx, c: ctx["w"] != 0)
        for k in range(6):
            I(f"ds_read_b32 v{36+k}, v{vN4} offset:{RED + 64*k}")
        I(f"s_lshl_b32 s{sA}, s2, 6")
        I(f"v_add_u32 v8, s{sA}, v{vN4}")
        I(f"ds_read_b32 v9, v8 offset:{HBUF}")
        I("s_waitcnt lgkmcnt(0)")
        self.tree_sum(range(36, 42), 36)
        self.RB(36)
        I(f"v_add_f32 v36, v36, v{B2F}")
        self.RB(36)
        I("v_add_f32 v36, v9, v36")
        I("v_cvt_pk_bf16_f32 v36, v36, v36")
        I("v_lshrrev_b32 v8, 1, v8")
        I("s_mov_b64 exec, 0xffff")
        I(f"global_store_short v8, v36, s[{pOUT}:{pOUT+1}]")
        I("s_cmp_eq_u32 s2, 0")
        I("s_cbranch_scc0 L_end", when=lambda ctx, c: ctx["id"] != 0)
        I("s_mov_b64 exec, 1")
        I(f"v_mov_b32 v10, s{sE0}")
        I(f"v_mov_b32 v11, s{sE1}")
        I(f"v_mov_b32 v12, {EPOCH_OFF}")
        I(f"global_store_dwordx2 v12, v[10:11], s[{pWS}:{pWS+1}]")
        I("s_branch L_end")

        a.label("L_vpath")
        XA, XF = 24, 28
        I(f"s_cmp_eq_u32 s{sW}, 8")
        I("s_cbranch_scc0 L_noz", when=lambda ctx, c: ctx["w"] != 8)
        for k in range(4):
            I(f"v_mov_b32 v{8+k}, 0")
        I(f"ds_write_b128 v8, v[8:11] offset:{FLG0}")
        a.label("L_noz")
        I(f"v_lshlrev_b32 v5, 4, v{vLANE}")
        I(f"global_load_dwordx4 v[{XA}:{XA+3}], v5, s[{pX}:{pX+1}]")
        I(f"s_lshl_b32 s{sA}, s{sKW}, 7")
        I(f"v_lshl_add_u32 v5, v{vR}, 5, s{sA}")
        I(f"global_load_dwordx4 v[{XF}:{XF+3}], v5, s[{pX}:{pX+1}]")
        I(f"global_load_dwordx4 v[{XF+4}:{XF+7}], v5, s[{pX}:{pX+1}] offset:16")
        vWQOFF = 6
        I(f"v_lshl_add_u32 v{vWQOFF}, v{vR}, 17, v{vC16}")
        I(f"s_lshl_b32 s{sA}, s{sH}, 8")
        I(f"s_lshl_b32 s{sB}, s{sKW}, 19")
        I(f"s_add_u32 s{sA}, s{sA}, s{sB}")
        I(f"s_add_u32 s{sWQB}, s{pWQ}, s{sA}")
        I(f"s_addc_u32 s{sWQB+1}, s{pWQ+1}, 0")
        self.reset_tmpbase()
        for i in range(16):
            self.vmem("global_load_dwordx4", f"v[{KV+4*i}:{KV+4*i+3}]", vWQOFF, sWQB, i * 8192, self.wq_mods2)
        I("s_waitcnt lgkmcnt(0)")
        self.barrier("B0")
        self.stamp(1)
        T8, S, MEAN, VV, SD, RC = 8, 16, 17, 18, 19, 20
        I("s_waitcnt vmcnt(18)")
        self.stamp(2)
        for t in range(4):
            I(f"v_lshlrev_b32 v{T8+2*t}, 16, v{XA+t}")
            I(f"v_and_b32 v{T8+2*t+1}, 0xffff0000, v{XA+t}")
        self.ln_scalars(T8, S, MEAN, VV, SD, RC)
        I("s_waitcnt vmcnt(16)")
        F, XP = 36, 52
        for t in range(8):
            I(f"v_lshlrev_b32 v{F+2*t}, 16, v{XF+t}")
            I(f"v_and_b32 v{F+2*t+1}, 0xffff0000, v{XF+t}")
        for k in range(16):
            self.ln_apply(F + k, 21, 22, MEAN, SD, RC)
        for j in range(8):
            I(f"v_cvt_pk_bf16_f32 v{XP+j}, v{F+2*j}, v{F+2*j+1}")
        ACC = 8
        for jp in range(8):
            I(f"s_waitcnt vmcnt({14 - 2*jp})")
            self.pair_dot(ACC, KV + 8 * jp, KV + 8 * jp + 4, XP + jp, jp == 0, 16, 17)
        self.r_reduce(ACC, 20)
        I(f"v_lshlrev_b32 v22, 1, v{vC16}")
        I(f"v_lshl_add_u32 v22, v{vR}, 3, v22")
        I(f"s_lshl_b32 s{sA}, s{sKW}, 9")
        I(f"v_add_u32 v22, s{sA}, v22")
        I(f"ds_write_b64 v22, v[20:21] offset:{QPART}")
        I("s_waitcnt lgkmcnt(0)")
        self.lds_signal(FLG0, 22, 23)
        self.stamp(3)
        I(f"s_cmp_lt_u32 s{sW}, 10")
        I("s_cbranch_scc0 L_q_skip", when=lambda ctx, c: ctx["w"] >= 10)
        self.lds_wait("L_wait_qp", FLG0, 8, 22, 23)
        I("v_and_b32 v23, 127, v0")
        I("v_lshlrev_b32 v22, 2, v23")
        for k in range(8):
            I(f"ds_read_b32 v{32+k}, v22 offset:{QPART + 512*k}")
        I("s_waitcnt lgkmcnt(0)")
        self.tree_sum(range(32, 40), 8)
        I("v_cvt_pk_bf16_f32 v8, v8, v8")
        I("v_lshlrev_b32 v22, 1, v23")
        I(f"ds_write_b16 v22, v8 offset:{QBF}")
        if self.dbg:
            I("v_lshlrev_b32 v9, 16, v8")
            I("v_lshlrev_b32 v22, 2, v23")
            I(f"s_lshl_b32 s{sA}, s2, 9")
            I(f"v_add_u32 v22, s{sA}, v22")
            self.dbg_store("global_store_dword", 22, "v9", 0)
        I("s_waitcnt lgkmcnt(0)")
        self.lds_signal(FLG1, 22, 23)
        a.label("L_q_skip")
        self.stamp(4)
        self.lds_wait("L_wait_k", FLG2, 8, 22, 23)
        self.reset_tmpbase()
        kv_loads()
        self.stamp(12)
        self.barrier("B3")
        self.barrier("B4")
        self.barrier("B5")
        self.stamp(9)
        P = 8
        I(f"s_lshl_b32 s{sA}, s{sKW}, 7")
        I(f"v_lshl_add_u32 v22, v{vR}, 5, s{sA}")
        I(f"ds_read_b128 v[{P}:{P+3}], v22 offset:{PLDS}")
        I(f"ds_read_b128 v[{P+4}:{P+7}], v22 offset:{PLDS+16}")
        I("s_waitcnt lgkmcnt(0)")
        ACC = 32
        for j in range(8):
            I(f"s_waitcnt vmcnt({14 - 2*j})")
            if j in (0, 3, 7):
                self.stamp({0: 5, 3: 6, 7: 7}[j])
            self.pair_dot(ACC, KV + 8 * j, KV + 8 * j + 4, P + j, j == 0, 16, 17)
        self.r_reduce(ACC, 20)
        I(f"v_lshlrev_b32 v22, 1, v{vC16}")
        I(f"v_lshl_add_u32 v22, v{vR}, 3, v22")
        I(f"s_lshl_b32 s{sA}, s{sKW}, 9")
        I(f"v_add_u32 v22, s{sA}, v22")
        I(f"ds_write_b64 v22, v[20:21] offset:{OPART}")
        I("s_waitcnt lgkmcnt(0)")
        self.stamp(10)
        self.barrier("B6")
        self.stamp(11)
        a.label("L_end")
        if self.stamps:
            self.stamp(17)
            for k in range(20):
                I(f"v_writelane_b32 v1, s{78+k}, {k}")
            I(f"s_lshl_b32 s{sA}, s2, 4")
            I(f"s_add_u32 s{sA}, s{sA}, s{sW}")
            I(f"s_lshl_b32 s{sA}, s{sA}, 7")
            I(f"s_add_u32 s{sA}, s{sA}, {STAMP_OFF}")
            I(f"s_add_u32 s{sX0}, s{pWS}, s{sA}")
            I(f"s_addc_u32 s{sX0+1}, s{pWS+1}, 0")
            I("v_and_b32 v2, 63, v0")
            I("v_lshlrev_b32 v2, 2, v2")
            I("s_mov_b64 exec, 0xfffff")
            I(f"global_store_dword v2, v1, s[{sX0}:{sX0+1}]")
        a.label("L_end2")
        I("s_endpgm")
        return a


def contexts():
    ctxs = []
    for wid in (0, 5, 40, 85, 86, 200, 255, 256, 260):
        for w in (0, 1, 2, 3, 5, 6, 7, 8, 9, 10, 15):
            ctxs.append(dict(name=f"id{wid}_w{w}", id=wid, w=w))
    return ctxs


def emit(path, **kw):
    g = G(**kw)
    a = g.build()
    rounds = a.resolve_hazards()
    res, errs = a.verify(contexts())
    for e in errs[:40]:
        print("VERIFY ERROR:", e)
    bars = {}
    for n, b in res.items():
        bars.setdefault(n.split("_")[0], set()).add(b)
    print("barrier counts per wg id:", {k: sorted(v) for k, v in bars.items()})
    print("instructions:", a.count(), "hazard rounds:", rounds)
    text = f"""; Fused decode layer: preLN + sliding-window cached attention + wo + preLN + squared-ReLU FFN
; @launch grid=(256,1,1) block=(1024,1,1) lds={LDS_BYTES}
.amdgcn_target "amdgcn-amd-amdhsa--gfx950"
.text
.globl {KERNEL}
.p2align 8
.type {KERNEL},@function
{KERNEL}:
{a.text()}
.section .rodata,"a"
.p2align 6
.amdhsa_kernel {KERNEL}
  .amdhsa_next_free_vgpr 128
  .amdhsa_next_free_sgpr 102
  .amdhsa_accum_offset 128
  .amdhsa_group_segment_fixed_size 0
  .amdhsa_kernarg_size 104
  .amdhsa_user_sgpr_count 2
  .amdhsa_user_sgpr_kernarg_segment_ptr 1
  .amdhsa_system_sgpr_workgroup_id_x 1
  .amdhsa_float_denorm_mode_32 3
  .amdhsa_float_denorm_mode_16_64 3
.end_amdhsa_kernel
"""
    open(path, "w").write(text)
    return errs


if __name__ == "__main__":
    ap = argparse.ArgumentParser()
    ap.add_argument("--out", default=f"cdna_kernels/{NAME}.s")
    ap.add_argument("--stop", default=None)
    ap.add_argument("--dbg", action="store_true")
    ap.add_argument("--stamps", action="store_true")
    args = ap.parse_args()
    errs = emit(args.out, stop_after=args.stop, dbg=args.dbg, stamps=args.stamps)
    sys.exit(1 if errs else 0)
```
